```python
import torch

def _softmax(x, axis=-1):
    return torch.softmax(x, dim=axis)
def _gelu(x):
    return torch.nn.functional.gelu(x, approximate="tanh")
def _silu(x):
    return torch.nn.functional.silu(x)
def _sigmoid(x):
    return torch.sigmoid(x)
def _layernorm(x, axis=-1, eps=1e-5):
    m = x.mean(dim=axis, keepdim=True)
    v = x.var(dim=axis, keepdim=True, unbiased=False)
    return (x - m) / torch.sqrt(v + eps)
def _scatter_add(tgt, idx, src, axis=0):
    return tgt.clone().index_add_(axis, idx, src)
def _segment_sum(src, seg, n):
    out = torch.zeros((n,) + src.shape[1:], dtype=src.dtype)
    return out.index_add_(0, seg, src)
def _pad(x, pw):
    flat = tuple(v for pair in reversed(pw) for v in pair)
    return torch.nn.functional.pad(x, flat)

kernel_name = 'standalone__batchnorm__prompt'

def setup_inputs():

    _w = (lambda a: (lambda t: t.to(torch.bfloat16) if t.is_floating_point() else t)(torch.as_tensor(a)))
    B, S, C = 2, 2048, 576
    K = 3
    return {
        "x": _w((lambda *s: torch.randn(*s, dtype=torch.bfloat16) * 0.05)(B, S, C)),
        "w": _w((lambda *s: torch.randn(*s, dtype=torch.bfloat16) * 0.05)(K, C, C) * (1.0 / (K * C) ** 0.5)),
        "mean": _w((lambda *s: torch.randn(*s, dtype=torch.bfloat16) * 0.05)(C) * 0.1),
        "var": _w(torch.abs((lambda *s: torch.randn(*s, dtype=torch.bfloat16) * 0.05)(C)) + 0.5),
        "g": _w((lambda *s: torch.randn(*s, dtype=torch.bfloat16) * 0.05)(C) + 1.0),
        "b": _w((lambda *s: torch.randn(*s, dtype=torch.bfloat16) * 0.05)(C) * 0.1),
    }

def reference(x, w, mean, var, g, b):
    K = 3
    P = K // 2
    S = x.shape[1]
    xp = _pad(x, ((0, 0), (P, P), (0, 0)))
    y = sum(torch.einsum('bsc,cd->bsd', xp[:, k:k + S, :], w[k]) for k in range(K))
    inv_std = 1.0 / torch.sqrt(var + 1e-5)
    y = (y - mean) * (g * inv_std) + b
    return _silu(y)
```

```python
import sys, os

REF = 'standalone__batchnorm__prompt.s.ref'
OUT = 'standalone__batchnorm__prompt.s'
KN = 'standalone__batchnorm__prompt_kernel'

PITCH = 1152
XBATCH = 2048 * PITCH
WTAP = 576 * PITCH
NSTAGE = 9
H_STD, H_LAST = 147, 137
NSTRIP = 14
NWG = 2 * NSTRIP * 9
XK = 19
XBUF = 162 * 128
WBUF = 192 * 128
XB = [0, XBUF, 2 * XBUF]
WB = [3 * XBUF + i * WBUF for i in range(3)]
LDS_TOTAL = 3 * XBUF + 3 * WBUF


def gen(NL=2, out=OUT):
    L = []
    A = L.append
    hdr = []
    for line in open(REF).read().split('\n'):
        if line.startswith('; @launch'):
            hdr.append(f'; @launch grid=({NWG},1,1) block=({64 * (4 + NL)},1,1) lds={LDS_TOTAL}')
        elif line.startswith(';'):
            hdr.append(line)
        else:
            break
    L.extend(hdr)
    A('.amdgcn_target "amdgcn-amd-amdhsa--gfx950"')
    A('.text')
    A(f'.globl {KN}')
    A('.p2align 8')
    A(f'.type {KN},@function')
    A(f'{KN}:')
    A('  s_load_dwordx16 s[4:19], s[0:1], 0')
    A(f'  s_cmp_ge_u32 s2, {NWG}')
    A('  s_cbranch_scc1 L_end')
    A('  s_and_b32 s20, s2, 7')
    A('  s_lshr_b32 s21, s2, 3')
    A('  s_mul_i32 s22, s20, 31')
    A('  s_min_u32 s23, s20, 4')
    A('  s_add_u32 s22, s22, s23')
    A('  s_add_u32 s22, s22, s21')
    A('  s_mul_i32 s23, s22, 57')
    A('  s_lshr_b32 s23, s23, 9')
    A('  s_mul_i32 s24, s23, 9')
    A('  s_sub_u32 s24, s22, s24')
    A(f'  s_cmp_ge_u32 s23, {NSTRIP}')
    A('  s_cselect_b32 s25, 1, 0')
    A(f'  s_mul_i32 s26, s25, {NSTRIP}')
    A('  s_sub_u32 s26, s23, s26')
    A(f'  s_mul_i32 s27, s26, {H_STD}')
    A(f'  s_mov_b32 s28, {H_STD}')
    A(f'  s_cmp_eq_u32 s26, {NSTRIP - 1}')
    A(f'  s_cselect_b32 s28, {H_LAST}, s28')
    A('  v_lshrrev_b32 v1, 6, v0')
    A('  v_and_b32 v0, 63, v0')
    A('  s_nop 1')
    A('  v_readfirstlane_b32 s29, v1')
    A('  s_waitcnt lgkmcnt(0)')
    A('  s_cmp_ge_u32 s29, 4')
    A('  s_cbranch_scc1 L_loader')

    ACC = 8
    XF = [48, 116]
    WF = [104, 172]
    XA = 184
    WA = 198
    SC = 201
    SH = 205
    T0 = 210
    VO = 230
    NVG = 232

    A('  v_and_b32 v1, 15, v0')
    A('  v_lshrrev_b32 v2, 4, v0')
    A('  v_lshlrev_b32 v3, 2, v1')
    A('  v_add_u32 v3, v3, v1')
    for q in range(-1, 6):
        A(f'  v_add_u32 v4, {q + 1}, v3')
        A('  v_and_b32 v5, 7, v4')
        A('  v_xor_b32 v5, v5, v2')
        A('  v_lshlrev_b32 v5, 4, v5')
        A('  v_lshlrev_b32 v4, 7, v4')
        A(f'  v_add_u32 v{XA + (q + 1)}, v4, v5')
        A(f'  v_xor_b32 v{XA + 7 + (q + 1)}, 64, v{XA + (q + 1)}')
    A('  v_lshrrev_b32 v4, 2, v1')
    A('  v_and_b32 v5, 3, v0')
    A('  v_lshrrev_b32 v6, 1, v4')
    A('  v_and_b32 v6, 1, v6')
    A('  v_and_b32 v7, 1, v2')
    A('  v_lshlrev_b32 v7, 1, v7')
    A('  v_or_b32 v6, v6, v7')
    A('  v_xor_b32 v6, s29, v6')
    A('  v_lshlrev_b32 v6, 5, v6')
    A('  v_lshlrev_b32 v7, 3, v2')
    A('  v_add_u32 v7, v7, v4')
    A('  v_lshlrev_b32 v7, 7, v7')
    A('  v_add_u32 v6, v6, v7')
    A('  v_lshlrev_b32 v5, 3, v5')
    A('  v_add_u32 v6, v6, v5')
    for be in range(3):
        A(f'  v_add_u32 v{WA + be}, {WB[be]}, v6')
    A(f'  v_mul_u32_u24 v4, {PITCH}, v3')
    A('  v_lshlrev_b32 v5, 3, v2')
    A('  v_add_u32 v4, v4, v5')
    A('  s_lshl_b32 s30, s29, 5')
    A(f'  v_add_u32 v{VO}, s30, v4')
    A('  s_lshl_b32 s30, s25, 11')
    A('  s_add_u32 s30, s30, s27')
    A(f'  s_mul_i32 s30, s30, {PITCH}')
    A('  s_lshl_b32 s31, s24, 7')
    A('  s_add_u32 s30, s30, s31')
    A('  s_add_u32 s32, s16, s30')
    A('  s_addc_u32 s33, s17, 0')
    A(f'  s_mul_i32 s34, s28, {PITCH}')
    A(f'  s_sub_u32 s34, s34, {PITCH - 128}')
    A('  s_mov_b32 s35, 0x00020000')
    A('  s_lshl_b32 s30, s24, 7')
    A('  s_lshl_b32 s31, s29, 5')
    A('  s_add_u32 s30, s30, s31')
    A('  v_lshlrev_b32 v4, 3, v2')
    A('  v_add_u32 v4, s30, v4')
    for i, base in enumerate((8, 10, 12, 14)):
        sr = 36 + 4 * i
        A(f'  s_mov_b32 s{sr}, s{base}')
        A(f'  s_mov_b32 s{sr + 1}, s{base + 1}')
        A(f'  s_mov_b32 s{sr + 2}, {576 * 2}')
        A(f'  s_mov_b32 s{sr + 3}, 0x00020000')
    for i in range(4):
        sr = 36 + 4 * i
        A(f'  buffer_load_dwordx2 v[{T0 + 2 * i}:{T0 + 2 * i + 1}], v4, s[{sr}:{sr + 3}], 0 offen')
    for i in range(40):
        A(f'  v_mov_b32 v{ACC + i}, 0')
    A('  s_waitcnt vmcnt(0)')
    def unpack(src, dst):
        A(f'  v_lshlrev_b32 v{dst}, 16, v{src}')
        A(f'  v_and_b32 v{dst + 1}, 0xffff0000, v{src}')
        A(f'  v_lshlrev_b32 v{dst + 2}, 16, v{src + 1}')
        A(f'  v_and_b32 v{dst + 3}, 0xffff0000, v{src + 1}')
    MEAN, VAR, GG, BB = T0 + 8, T0 + 12, 1, 5
    unpack(T0 + 0, T0 + 8)
    unpack(T0 + 2, T0 + 12)
    unpack(T0 + 4, T0 + 16)
    unpack(T0 + 6, SH)
    A('  v_mov_b32 v1, 0x3727c5ac')

    def rbf16(reg):
        A(f'  v_cvt_pk_bf16_f32 v{reg}, v{reg}, v{reg}')
        A(f'  v_lshlrev_b32 v{reg}, 16, v{reg}')
    for j in range(4):
        v = T0 + 12 + j
        A(f'  v_add_f32 v{v}, v{v}, v1')
        rbf16(v)
        A(f'  v_sqrt_f32 v{v}, v{v}')
        A('  s_nop 0')
        rbf16(v)
        A(f'  v_rcp_f32 v{v}, v{v}')
        A('  s_nop 0')
        rbf16(v)
        A(f'  v_mul_f32 v{v}, v{T0 + 16 + j}, v{v}')
        rbf16(v)
        A(f'  v_mov_b32 v{SC + j}, v{v}')
        A(f'  v_mul_f32 v{T0 + 8 + j}, v{T0 + 8 + j}, v{v}')
        A(f'  v_sub_f32 v{SH + j}, v{SH + j}, v{T0 + 8 + j}')

    def reads_for_chunk(u):
        s, kk = divmod(u, 2)
        be = s % 3
        p = u % 2
        R = []
        for t in range(3):
            for j in range(2):
                R.append(f'  ds_read_b64_tr_b16 v[{WF[p] + 4 * t + 2 * j}:{WF[p] + 4 * t + 2 * j + 1}], v{WA + be} offset:{t * 8192 + kk * 4096 + j * 512}')
        for ga in range(2):
            for q in range(-1, 6):
                d = XF[p] + (ga * 7 + q + 1) * 4
                R.append(f'  ds_read_b128 v[{d}:{d + 3}], v{XA + kk * 7 + q + 1} offset:{XB[be] + ga * 10240}')
        return R

    def mfmas_for_chunk(u):
        p = u % 2
        M = []
        for t in range(3):
            for ga in range(2):
                for i in range(5):
                    q = i + t - 1
                    a = ACC + (ga * 5 + i) * 4
                    xb = XF[p] + (ga * 7 + q + 1) * 4
                    wb = WF[p] + 4 * t
                    M.append(f'  v_mfma_f32_16x16x32_bf16 v[{a}:{a + 3}], v[{wb}:{wb + 3}], v[{xb}:{xb + 3}], v[{a}:{a + 3}]')
        return M

    A('  s_barrier')
    for r in reads_for_chunk(0):
        A(r)
    NCH = 2 * NSTAGE
    for u in range(NCH):
        A(f'; ---- chunk {u}')
        A('  s_waitcnt lgkmcnt(0)')
        if u % 2 == 1 and (u // 2 + 1) < NSTAGE:
            A('  s_barrier')
        M = mfmas_for_chunk(u)
        R = reads_for_chunk(u + 1) if u + 1 < NCH else []
        for k, m in enumerate(M):
            A(m)
            if k < len(R):
                A(R[k])
    A('; ---------------- epilogue ----------------')
    A('  s_nop 7')
    A('  s_nop 7')
    A('  v_mov_b32 v1, 0xbfb8aa3b')
    for ga in range(2):
        for i in range(5):
            a = ACC + (ga * 5 + i) * 4
            tt = T0 + ((ga * 5 + i) % 2) * 10
            for j in range(4):
                A(f'  v_fma_f32 v{a + j}, v{a + j}, v{SC + j}, v{SH + j}')
            for j in range(4):
                A(f'  v_mul_f32 v{tt + j}, v{a + j}, v1')
            for j in range(4):
                A(f'  v_exp_f32 v{tt + j}, v{tt + j}')
            for j in range(4):
                A(f'  v_add_f32 v{tt + j}, 1.0, v{tt + j}')
            for j in range(4):
                A(f'  v_rcp_f32 v{tt + j}, v{tt + j}')
            for j in range(4):
                A(f'  v_mul_f32 v{tt + j}, v{a + j}, v{tt + j}')
            A(f'  v_cvt_pk_bf16_f32 v{tt + 4}, v{tt}, v{tt + 1}')
            A(f'  v_cvt_pk_bf16_f32 v{tt + 5}, v{tt + 2}, v{tt + 3}')
            A(f'  s_mov_b32 s30, {(80 * ga + i) * PITCH}')
            A(f'  buffer_store_dwordx2 v[{tt + 4}:{tt + 5}], v{VO}, s[32:35], s30 offen')
    A('  s_waitcnt vmcnt(0)')
    A('  s_branch L_end')

    A('L_loader:')
    A(f'  s_mul_i32 s30, s25, {XBATCH}')
    A('  s_add_u32 s32, s4, s30')
    A('  s_addc_u32 s33, s5, 0')
    A(f'  s_mov_b32 s34, {XBATCH}')
    A('  s_mov_b32 s35, 0x00020000')
    A('  s_lshl_b32 s30, s24, 7')
    A('  s_add_u32 s36, s6, s30')
    A('  s_addc_u32 s37, s7, 0')
    A(f'  s_sub_u32 s38, {3 * WTAP}, s30')
    A('  s_mov_b32 s39, 0x00020000')
    A(f'  s_mul_i32 s40, s27, {PITCH}')
    A(f'  s_sub_u32 s40, s40, {PITCH}')
    A('  s_cmp_eq_u32 s26, 0')
    A('  s_cselect_b32 s41, 0, s40')
    A('  s_cselect_b32 s42, -1, 0')
    A('  v_lshrrev_b32 v1, 3, v0')
    A('  v_and_b32 v2, 7, v0')
    A(f'  v_mul_u32_u24 v3, {PITCH}, v1')
    A('  v_xor_b32 v4, v2, v1')
    A('  v_lshlrev_b32 v4, 4, v4')
    A('  v_add_u32 v4, v3, v4')
    A(f'  v_subrev_u32 v5, {PITCH}, v4')
    A('  v_mov_b32 v6, 0x40000000')
    A('  v_cmp_gt_u32 vcc, 8, v0')
    A('  v_cndmask_b32 v5, v5, v6, vcc')
    A('  v_mov_b32 v6, s42')
    A('  v_cmp_ne_u32 vcc, 0, v6')
    A('  v_cndmask_b32 v5, v4, v5, vcc')
    A('  v_lshrrev_b32 v6, 1, v1')
    A('  v_and_b32 v6, 1, v6')
    A('  v_lshrrev_b32 v7, 1, v2')
    A('  v_xor_b32 v8, v7, v6')
    A('  v_xor_b32 v9, 2, v8')
    A('  v_and_b32 v10, 1, v2')
    A('  v_lshlrev_b32 v8, 5, v8')
    A('  v_lshlrev_b32 v9, 5, v9')
    A('  v_lshlrev_b32 v10, 4, v10')
    A('  v_add_u32 v8, v8, v10')
    A('  v_add_u32 v9, v9, v10')
    A('  v_add_u32 v6, v3, v8')
    A('  v_add_u32 v7, v3, v9')
    A('  s_nop 4')

    def dma_ops(s):
        be = s % 3
        ops = []
        for k in range(XK):
            ops.append(('x', k, be))
        for t in range(3):
            for h in range(8):
                ops.append(('w', (t, h), be))
        return ops

    def emit_dma(op, s):
        kind, idx, be = op
        if kind == 'x':
            k = idx
            A(f'  s_mov_b32 m0, {XB[be] + k * 1024}')
            if k == 0:
                A(f'  s_add_u32 s44, s41, {s * 128}')
                A('  buffer_load_dwordx4 v5, s[32:35], s44 offen lds')
            else:
                A(f'  s_add_u32 s44, s40, {k * 8 * PITCH + s * 128}')
                A('  buffer_load_dwordx4 v4, s[32:35], s44 offen lds')
        else:
            t, h = idx
            A(f'  s_mov_b32 m0, {WB[be] + (t * 8 + h) * 1024}')
            A(f'  s_mov_b32 s44, {t * WTAP + (s * 64 + 8 * h) * PITCH}')
            A(f'  buffer_load_dwordx4 v{6 + (h & 1)}, s[36:39], s44 offen lds')

    def loader_ops(s, lw):
        ops = dma_ops(s)
        return ops[lw::NL]

    for lw in range(NL):
        if lw + 1 < NL:
            A(f'  s_cmp_lg_u32 s29, {4 + lw}')
            A(f'  s_cbranch_scc1 L_loader{lw + 1}')
        n = len(loader_ops(0, lw))
        for s in range(3):
            for op in loader_ops(s, lw):
                emit_dma(op, s)
        A(f'  s_waitcnt vmcnt({2 * n})')
        A('  s_barrier')
        A(f'  s_waitcnt vmcnt({n})')
        A('  s_barrier')
        for s in range(2, NSTAGE):
            if s + 1 < NSTAGE:
                for op in loader_ops(s + 1, lw):
                    emit_dma(op, s + 1)
                A(f'  s_waitcnt vmcnt({n})')
            else:
                A('  s_waitcnt vmcnt(0)')
            A('  s_barrier')
        A('  s_branch L_end')
        if lw + 1 < NL:
            A(f'L_loader{lw + 1}:')
    A('L_end:')
    A('s_endpgm')
    A('.section .rodata,"a"')
    A('.p2align 6')
    A(f'.amdhsa_kernel {KN}')
    A(f'  .amdhsa_next_free_vgpr {NVG}')
    A('  .amdhsa_next_free_sgpr 102')
    A(f'  .amdhsa_accum_offset {NVG}')
    A('  .amdhsa_group_segment_fixed_size 0')
    A('  .amdhsa_kernarg_size 72')
    A('  .amdhsa_user_sgpr_count 2')
    A('  .amdhsa_user_sgpr_kernarg_segment_ptr 1')
    A('  .amdhsa_system_sgpr_workgroup_id_x 1')
    A('.end_amdhsa_kernel')
    open(out, 'w').write('\n'.join(L) + '\n')


if __name__ == '__main__':
    gen()
```

```python
import sys, os

REF = 'standalone__batchnorm__prompt.s.ref'
OUT = 'standalone__batchnorm__prompt.s'
KN = 'standalone__batchnorm__prompt_kernel'

PITCH = 1152
XBATCH = 2048 * PITCH
WTAP = 576 * PITCH
NSTAGE = 9
H_STD, H_LAST = 147, 137
NSTRIP = 14
NWG = 2 * NSTRIP * 9
XK = 19
XBUF = 162 * 128
WBUF = 192 * 128
WB0 = 3 * XBUF
LDS_TOTAL = 3 * XBUF + 3 * WBUF


def gen(out=OUT, NL=2, stamps=False, nomfma=False, nodma=False, pd=None, endwait=False):
    L = []
    A = L.append
    for line in open(REF).read().split('\n'):
        if line.startswith('; @launch'):
            A(f'; @launch grid=({NWG},1,1) block=({64 * (4 + NL)},1,1) lds={LDS_TOTAL}')
        elif line.startswith(';'):
            A(line)
        else:
            break
    A('.amdgcn_target "amdgcn-amd-amdhsa--gfx950"')
    A('.text')
    A(f'.globl {KN}')
    A('.p2align 8')
    A(f'.type {KN},@function')
    A(f'{KN}:')
    A('  s_load_dwordx16 s[4:19], s[0:1], 0')
    A(f'  s_cmp_ge_u32 s2, {NWG}')
    A('  s_cbranch_scc1 L_end')
    if stamps:
        A('  s_load_dwordx2 s[72:73], s[0:1], 64')
        A('  s_memrealtime s[60:61]')
        A('  s_memtime s[62:63]')
    A('  s_and_b32 s20, s2, 7')
    A('  s_lshr_b32 s21, s2, 3')
    A('  s_mul_i32 s22, s20, 31')
    A('  s_min_u32 s23, s20, 4')
    A('  s_add_u32 s22, s22, s23')
    A('  s_add_u32 s22, s22, s21')
    A('  s_mul_i32 s23, s22, 57')
    A('  s_lshr_b32 s23, s23, 9')
    A('  s_mul_i32 s24, s23, 9')
    A('  s_sub_u32 s24, s22, s24')
    A(f'  s_cmp_ge_u32 s23, {NSTRIP}')
    A('  s_cselect_b32 s25, 1, 0')
    A(f'  s_mul_i32 s26, s25, {NSTRIP}')
    A('  s_sub_u32 s26, s23, s26')
    A(f'  s_mul_i32 s27, s26, {H_STD}')
    A(f'  s_mov_b32 s28, {H_STD}')
    A(f'  s_cmp_eq_u32 s26, {NSTRIP - 1}')
    A(f'  s_cselect_b32 s28, {H_LAST}, s28')
    A('  v_lshrrev_b32 v1, 6, v0')
    A('  v_and_b32 v0, 63, v0')
    A('  s_nop 1')
    A('  v_readfirstlane_b32 s29, v1')
    A('  s_waitcnt lgkmcnt(0)')
    A('  s_cmp_ge_u32 s29, 4')
    A('  s_cbranch_scc1 L_loader')

    ACC = 8
    XF = [48, 116]
    WF = [104, 172]
    XA = [184, 191]
    WA = [198, 199]
    SC = 200
    SH = 204
    T0 = 208
    VO = 228
    NVG = 232

    A('  s_lshl_b32 s30, s24, 7')
    A('  s_lshl_b32 s31, s29, 5')
    A('  s_add_u32 s30, s30, s31')
    A('  v_lshrrev_b32 v2, 4, v0')
    A('  v_lshlrev_b32 v4, 3, v2')
    A('  v_add_u32 v4, s30, v4')
    for i, base in enumerate((8, 10, 12, 14)):
        sr = 36 + 4 * i
        A(f'  s_mov_b32 s{sr}, s{base}')
        A(f'  s_mov_b32 s{sr + 1}, s{base + 1}')
        A(f'  s_mov_b32 s{sr + 2}, {576 * 2}')
        A(f'  s_mov_b32 s{sr + 3}, 0x00020000')
    for i in range(4):
        sr = 36 + 4 * i
        A(f'  buffer_load_dwordx2 v[{T0 + 2 * i}:{T0 + 2 * i + 1}], v4, s[{sr}:{sr + 3}], 0 offen')
    A('  v_and_b32 v1, 15, v0')
    A('  v_lshlrev_b32 v3, 2, v1')
    A('  v_add_u32 v3, v3, v1')
    for q in range(-1, 6):
        A(f'  v_add_u32 v4, {q + 1}, v3')
        A('  v_and_b32 v5, 7, v4')
        A('  v_xor_b32 v5, v5, v2')
        A('  v_lshlrev_b32 v5, 4, v5')
        A('  v_lshlrev_b32 v4, 7, v4')
        A(f'  v_add_u32 v{XA[0] + q + 1}, v4, v5')
        A(f'  v_xor_b32 v{XA[1] + q + 1}, 64, v{XA[0] + q + 1}')
    A('  v_lshrrev_b32 v4, 2, v1')
    A('  v_and_b32 v5, 3, v0')
    A('  v_lshrrev_b32 v6, 1, v4')
    A('  v_and_b32 v6, 1, v6')
    A('  v_and_b32 v7, 1, v2')
    A('  v_lshlrev_b32 v7, 1, v7')
    A('  v_or_b32 v6, v6, v7')
    A('  v_xor_b32 v6, s29, v6')
    A('  v_lshlrev_b32 v6, 5, v6')
    A('  v_lshlrev_b32 v7, 3, v2')
    A('  v_add_u32 v7, v7, v4')
    A('  v_lshlrev_b32 v7, 7, v7')
    A('  v_add_u32 v6, v6, v7')
    A('  v_lshlrev_b32 v5, 3, v5')
    A('  v_add_u32 v6, v6, v5')
    A(f'  v_add_u32 v{WA[0]}, {WB0}, v6')
    A(f'  v_add_u32 v{WA[1]}, {WB0 + 4096}, v6')
    A(f'  v_mul_u32_u24 v4, {PITCH}, v3')
    A('  v_lshlrev_b32 v5, 3, v2')
    A('  v_add_u32 v4, v4, v5')
    A('  s_lshl_b32 s30, s29, 5')
    A(f'  v_add_u32 v{VO}, s30, v4')
    A('  s_lshl_b32 s30, s25, 11')
    A('  s_add_u32 s30, s30, s27')
    A(f'  s_mul_i32 s30, s30, {PITCH}')
    A('  s_lshl_b32 s31, s24, 7')
    A('  s_add_u32 s30, s30, s31')
    A('  s_add_u32 s32, s16, s30')
    A('  s_addc_u32 s33, s17, 0')
    A(f'  s_mul_i32 s34, s28, {PITCH}')
    A(f'  s_sub_u32 s34, s34, {PITCH - 128}')
    A('  s_mov_b32 s35, 0x00020000')
    for i in range(40):
        A(f'  v_mov_b32 v{ACC + i}, 0')
    A('  s_waitcnt vmcnt(0)')

    def unpack(src, dst):
        A(f'  v_lshlrev_b32 v{dst}, 16, v{src}')
        A(f'  v_and_b32 v{dst + 1}, 0xffff0000, v{src}')
        A(f'  v_lshlrev_b32 v{dst + 2}, 16, v{src + 1}')
        A(f'  v_and_b32 v{dst + 3}, 0xffff0000, v{src + 1}')
    unpack(T0 + 0, T0 + 8)
    unpack(T0 + 2, T0 + 12)
    unpack(T0 + 4, T0 + 16)
    unpack(T0 + 6, SH)
    A('  v_mov_b32 v1, 0x3727c5ac')

    def rbf16(reg):
        A(f'  v_cvt_pk_bf16_f32 v{reg}, v{reg}, v{reg}')
        A(f'  v_lshlrev_b32 v{reg}, 16, v{reg}')
    for j in range(4):
        v = T0 + 12 + j
        A(f'  v_add_f32 v{v}, v{v}, v1')
        rbf16(v)
        A(f'  v_sqrt_f32 v{v}, v{v}')
        A('  s_nop 0')
        rbf16(v)
        A(f'  v_rcp_f32 v{v}, v{v}')
        A('  s_nop 0')
        rbf16(v)
        A(f'  v_mul_f32 v{v}, v{T0 + 16 + j}, v{v}')
        rbf16(v)
        A(f'  v_mov_b32 v{SC + j}, v{v}')
        A(f'  v_mul_f32 v{T0 + 8 + j}, v{T0 + 8 + j}, v{v}')
        A(f'  v_sub_f32 v{SH + j}, v{SH + j}, v{T0 + 8 + j}')

    def reads(p, kk):
        R = []
        for t in range(3):
            for j in range(2):
                R.append(f'  ds_read_b64_tr_b16 v[{WF[p] + 4 * t + 2 * j}:{WF[p] + 4 * t + 2 * j + 1}], v{WA[kk]} offset:{t * 8192 + j * 512}')
        for ga in range(2):
            for q in range(-1, 6):
                d = XF[p] + (ga * 7 + q + 1) * 4
                R.append(f'  ds_read_b128 v[{d}:{d + 3}], v{XA[kk] + q + 1} offset:{ga * 10240}')
        return R

    def mfmas(p):
        M = []
        for t in range(3):
            for ga in range(2):
                for i in range(5):
                    q = i + t - 1
                    a = ACC + (ga * 5 + i) * 4
                    xb = XF[p] + (ga * 7 + q + 1) * 4
                    wb = WF[p] + 4 * t
                    M.append(f'  v_mfma_f32_16x16x32_bf16 v[{a}:{a + 3}], v[{wb}:{wb + 3}], v[{xb}:{xb + 3}], v[{a}:{a + 3}]')
        return M

    def adv(kk, sx, sw):
        return [f'  v_add_u32 v{XA[kk] + i}, {sx}, v{XA[kk] + i}' for i in range(7)] + [f'  v_add_u32 v{WA[kk]}, {sw}, v{WA[kk]}']

    def chunk(p, R, V):
        M = mfmas(p)
        extra = list(R) + list(V)
        for k, m in enumerate(M):
            if not nomfma:
                A(m)
                if k < len(extra):
                    A(extra[k])

    A('  s_mov_b32 s52, 0')
    A('  s_mov_b32 s53, 0')
    A('  s_barrier')
    if stamps:
        A('  s_memtime s[64:65]')
    for r in reads(0, 0):
        A(r)
    for v in adv(0, XBUF, WBUF):
        A(v)
    A('L_cloop:')
    A(f'  s_mov_b32 s54, {XBUF}')
    A(f'  s_mov_b32 s56, {WBUF}')
    A('  s_cmp_eq_u32 s53, 2')
    A(f'  s_cselect_b32 s54, {-2 * XBUF}, s54')
    A(f'  s_cselect_b32 s56, {-2 * WBUF}, s56')
    A(f'  s_mov_b32 s55, {XBUF}')
    A(f'  s_mov_b32 s57, {WBUF}')
    A('  s_cmp_eq_u32 s53, 1')
    A(f'  s_cselect_b32 s55, {-2 * XBUF}, s55')
    A(f'  s_cselect_b32 s57, {-2 * WBUF}, s57')
    A('  s_waitcnt lgkmcnt(0)')
    chunk(0, reads(1, 1), [])
    A('  s_waitcnt lgkmcnt(0)')
    A('  s_barrier')
    chunk(1, reads(0, 0), adv(1, 's54', 's56'))
    for v in adv(0, 's55', 's57'):
        A(v)
    A('  s_add_u32 s53, s53, 1')
    A('  s_cmp_eq_u32 s53, 3')
    A('  s_cselect_b32 s53, 0, s53')
    A('  s_add_u32 s52, s52, 1')
    A(f'  s_cmp_lt_u32 s52, {NSTAGE}')
    A('  s_cbranch_scc1 L_cloop')
    if stamps:
        A('  s_memtime s[66:67]')
    A('  s_nop 7')
    A('  s_nop 7')
    A('  v_mov_b32 v1, 0xbfb8aa3b')
    for ga in range(2):
        for i in range(5):
            a = ACC + (ga * 5 + i) * 4
            tt = T0 + ((ga * 5 + i) % 2) * 10
            for j in range(4):
                A(f'  v_fma_f32 v{a + j}, v{a + j}, v{SC + j}, v{SH + j}')
            for j in range(4):
                A(f'  v_mul_f32 v{tt + j}, v{a + j}, v1')
            for j in range(4):
                A(f'  v_exp_f32 v{tt + j}, v{tt + j}')
            for j in range(4):
                A(f'  v_add_f32 v{tt + j}, 1.0, v{tt + j}')
            for j in range(4):
                A(f'  v_rcp_f32 v{tt + j}, v{tt + j}')
            for j in range(4):
                A(f'  v_mul_f32 v{tt + j}, v{a + j}, v{tt + j}')
            A(f'  v_cvt_pk_bf16_f32 v{tt + 4}, v{tt}, v{tt + 1}')
            A(f'  v_cvt_pk_bf16_f32 v{tt + 5}, v{tt + 2}, v{tt + 3}')
            A(f'  s_mov_b32 s30, {(80 * ga + i) * PITCH}')
            A(f'  buffer_store_dwordx2 v[{tt + 4}:{tt + 5}], v{VO}, s[32:35], s30 offen')
    if endwait or stamps:
        A('  s_waitcnt vmcnt(0)')
    A('  s_branch L_fin' if stamps else '  s_branch L_end')

    A('L_loader:')
    A(f'  s_mul_i32 s30, s25, {XBATCH}')
    A('  s_add_u32 s32, s4, s30')
    A('  s_addc_u32 s33, s5, 0')
    A(f'  s_mov_b32 s34, {XBATCH}')
    A('  s_mov_b32 s35, 0x00020000')
    A('  s_lshl_b32 s30, s24, 7')
    A('  s_add_u32 s36, s6, s30')
    A('  s_addc_u32 s37, s7, 0')
    A(f'  s_sub_u32 s38, {3 * WTAP}, s30')
    A('  s_mov_b32 s39, 0x00020000')
    A(f'  s_mul_i32 s40, s27, {PITCH}')
    A(f'  s_sub_u32 s40, s40, {PITCH}')
    A('  s_cmp_eq_u32 s26, 0')
    A('  s_cselect_b32 s41, 0, s40')
    A('  s_cselect_b32 s42, -1, 0')
    A('  v_lshrrev_b32 v1, 3, v0')
    A('  v_and_b32 v2, 7, v0')
    A(f'  v_mul_u32_u24 v3, {PITCH}, v1')
    A('  v_xor_b32 v4, v2, v1')
    A('  v_lshlrev_b32 v4, 4, v4')
    A('  v_add_u32 v4, v3, v4')
    A(f'  v_subrev_u32 v5, {PITCH}, v4')
    A('  v_mov_b32 v6, 0x40000000')
    A('  v_cmp_gt_u32 vcc, 8, v0')
    A('  v_cndmask_b32 v5, v5, v6, vcc')
    A('  v_mov_b32 v6, s42')
    A('  v_cmp_ne_u32 vcc, 0, v6')
    A('  v_cndmask_b32 v5, v4, v5, vcc')
    A('  v_lshrrev_b32 v6, 1, v1')
    A('  v_and_b32 v6, 1, v6')
    A('  v_lshrrev_b32 v7, 1, v2')
    A('  v_xor_b32 v8, v7, v6')
    A('  v_xor_b32 v9, 2, v8')
    A('  v_and_b32 v10, 1, v2')
    A('  v_lshlrev_b32 v8, 5, v8')
    A('  v_lshlrev_b32 v9, 5, v9')
    A('  v_lshlrev_b32 v10, 4, v10')
    A('  v_add_u32 v8, v8, v10')
    A('  v_add_u32 v9, v9, v10')
    A('  v_add_u32 v6, v3, v8')
    A('  v_add_u32 v7, v3, v9')
    if pd is not None:
        A('  s_mul_i32 s30, s21, 54')
        A('  v_add_u32 v11, s30, v0')
        A('  v_mul_u32_u24 v12, 57, v11')
        A('  v_lshrrev_b32 v12, 9, v12')
        A('  v_mul_u32_u24 v13, 9, v12')
        A('  v_sub_u32 v13, v11, v13')
        A('  v_lshrrev_b32 v14, 6, v12')
        A('  v_and_b32 v15, 63, v12')
        A(f'  v_mul_u32_u24 v14, {WTAP // 16}, v14')
        A('  v_lshlrev_b32 v14, 4, v14')
        A(f'  v_mul_u32_u24 v15, {PITCH}, v15')
        A('  v_lshlrev_b32 v13, 7, v13')
        A('  v_add_u32 v14, v14, v15')
        A('  v_add_u32 v14, v14, v13')
        A('  v_cmp_gt_u32 vcc, 54, v0')
        A('  v_mov_b32 v15, 0x40000000')
        A('  v_cndmask_b32 v11, v15, v14, vcc')
        A('  s_mul_i32 s30, s24, 17')
        A('  v_add_u32 v12, s30, v0')
        A(f'  v_mul_u32_u24 v12, {PITCH}, v12')
        A('  v_cmp_gt_u32 vcc, 17, v0')
        A('  v_cndmask_b32 v12, v15, v12, vcc')
        A('  s_mov_b32 s80, s6')
        A('  s_mov_b32 s81, s7')
        A(f'  s_mov_b32 s82, {3 * WTAP}')
        A('  s_mov_b32 s83, 0x00020000')

    ops = [('x', k) for k in range(XK)] + [('w', (t, h)) for t in range(3) for h in range(8)]

    def emit_dma(op):
        kind, idx = op
        if nodma:
            return
        if kind == 'x':
            k = idx
            A(f'  s_add_u32 m0, s48, {k * 1024}')
            if k == 0:
                A('  s_add_u32 s44, s41, s46')
                A('  buffer_load_dwordx4 v5, s[32:35], s44 offen lds')
            else:
                A(f'  s_add_u32 s44, s51, {k * 8 * PITCH}')
                A('  buffer_load_dwordx4 v4, s[32:35], s44 offen lds')
        else:
            t, h = idx
            A(f'  s_add_u32 m0, s49, {(t * 8 + h) * 1024}')
            A(f'  s_add_u32 s44, s47, {t * WTAP + 8 * h * PITCH}')
            A(f'  buffer_load_dwordx4 v{6 + (h & 1)}, s[36:39], s44 offen lds')

    for lw in range(NL):
        if lw + 1 < NL:
            A(f'  s_cmp_lg_u32 s29, {4 + lw}')
            A(f'  s_cbranch_scc1 L_loader{lw + 1}')
        my = ops[lw::NL]
        n = len(my)
        npf = 1 if (pd is not None and lw < 2) else 0
        A('  s_mov_b32 s45, 0')
        A('  s_mov_b32 s46, 0')
        A('  s_mov_b32 s47, 0')
        A('  s_mov_b32 s50, 0')
        A(f'L_lloop{lw}:')
        A(f'  s_mul_i32 s48, s50, {XBUF}')
        A(f'  s_mul_i32 s49, s50, {WBUF}')
        A(f'  s_add_u32 s49, s49, {WB0}')
        A('  s_add_u32 s51, s40, s46')
        for op in my:
            emit_dma(op)
        if npf:
            A(f'  s_cmp_gt_u32 s45, {NSTAGE - 1 - pd}')
            if lw == 0:
                A(f'  s_add_u32 s44, s47, {pd * 64 * PITCH}')
                A('  s_cselect_b32 s44, 0x40000000, s44')
                A('  buffer_load_dword v20, v11, s[80:83], s44 offen')
            else:
                A(f'  s_add_u32 s44, s51, {PITCH + pd * 128}')
                A('  s_cselect_b32 s44, 0x40000000, s44')
                A('  buffer_load_dword v20, v12, s[32:35], s44 offen')
        if stamps:
            A('  s_cmp_lg_u32 s45, 2')
            A(f'  s_cbranch_scc1 L_ns{lw}')
            A('  s_memtime s[64:65]')
            A(f'L_ns{lw}:')
        A('  s_cmp_lt_u32 s45, 2')
        A(f'  s_cbranch_scc1 L_lnext{lw}')
        A(f'  s_cbranch_scc0 L_lw{lw}')
        A(f'L_lw{lw}:')
        A('  s_cmp_lg_u32 s45, 2')
        A(f'  s_cbranch_scc1 L_lskip{lw}')
        A(f'  s_waitcnt vmcnt({2 * n + 3 * npf})')
        A('  s_barrier')
        A(f'L_lskip{lw}:')
        A(f'  s_waitcnt vmcnt({n + 2 * npf})')
        A('  s_barrier')
        A(f'L_lnext{lw}:')
        A('  s_add_u32 s45, s45, 1')
        A('  s_add_u32 s46, s46, 128')
        A(f'  s_add_u32 s47, s47, {64 * PITCH}')
        A('  s_add_u32 s50, s50, 1')
        A('  s_cmp_eq_u32 s50, 3')
        A('  s_cselect_b32 s50, 0, s50')
        A(f'  s_cmp_lt_u32 s45, {NSTAGE}')
        A(f'  s_cbranch_scc1 L_lloop{lw}')
        A('  s_waitcnt vmcnt(0)')
        A('  s_barrier')
        A('  s_barrier')
        if stamps:
            A('  s_memtime s[66:67]')
        A('  s_branch L_fin' if stamps else '  s_branch L_end')
        if lw + 1 < NL:
            A(f'L_loader{lw + 1}:')
    if stamps:
        A('L_fin:')
        A('  s_memtime s[68:69]')
        A('  s_memrealtime s[70:71]')
        A('  s_waitcnt lgkmcnt(0)')
        A('  s_mov_b32 s76, s72')
        A('  s_mov_b32 s77, s73')
        A('  s_mov_b32 s78, 0x100000')
        A('  s_mov_b32 s79, 0x00020000')
        A(f'  s_mul_i32 s74, s2, {4 + NL}')
        A('  s_add_u32 s74, s74, s29')
        A('  s_lshl_b32 s74, s74, 6')
        A('  v_mov_b32 v1, s74')
        for i, sr in enumerate((60, 62, 64, 66, 68, 70)):
            A(f'  v_mov_b32 v{4 + i}, s{sr}')
        A('  v_mov_b32 v10, s29')
        A('  v_mov_b32 v11, s2')
        A('  buffer_store_dwordx4 v[4:7], v1, s[76:79], 0 offen')
        A('  buffer_store_dwordx4 v[8:11], v1, s[76:79], 0 offen offset:16')
        A('  s_waitcnt vmcnt(0)')
    A('L_end:')
    A('s_endpgm')
    A('.section .rodata,"a"')
    A('.p2align 6')
    A(f'.amdhsa_kernel {KN}')
    A(f'  .amdhsa_next_free_vgpr {NVG}')
    A('  .amdhsa_next_free_sgpr 102')
    A(f'  .amdhsa_accum_offset {NVG}')
    A('  .amdhsa_group_segment_fixed_size 0')
    A('  .amdhsa_kernarg_size 72')
    A('  .amdhsa_user_sgpr_count 2')
    A('  .amdhsa_user_sgpr_kernarg_segment_ptr 1')
    A('  .amdhsa_system_sgpr_workgroup_id_x 1')
    A('.end_amdhsa_kernel')
    open(out, 'w').write('\n'.join(L) + '\n')


if __name__ == '__main__':
    if len(sys.argv) > 1 and sys.argv[1] == 'bench':
        gen(out='c_base.s', stamps=True)
        gen(out='c_pd2.s', stamps=True, pd=2)
        gen(out='c_pd4.s', stamps=True, pd=4)
    else:
        gen()
```

```python
import sys, os

REF = 'standalone__batchnorm__prompt.s.ref'
OUT = 'standalone__batchnorm__prompt.s'
KN = 'standalone__batchnorm__prompt_kernel'

PITCH = 1152
XBATCH = 2048 * PITCH
WTAP = 576 * PITCH
NSTAGE = 9
H_STD, H_LAST = 147, 137
NSTRIP = 14
NWG = 2 * NSTRIP * 9
XK = 19
XBUF = 162 * 128
WBUF = 192 * 128
WB0 = 3 * XBUF
LDS_TOTAL = 3 * XBUF + 3 * WBUF


def gen(out=OUT, NL=2, stamps=False, nomfma=False, nodma=False, pd=None, endwait=False, dbg=False):
    L = []
    A = L.append
    for line in open(REF).read().split('\n'):
        if line.startswith('; @launch'):
            A(f'; @launch grid=({NWG},1,1) block=({64 * (4 + NL)},1,1) lds={LDS_TOTAL}')
        elif line.startswith(';'):
            A(line)
        else:
            break
    A('.amdgcn_target "amdgcn-amd-amdhsa--gfx950"')
    A('.text')
    A(f'.globl {KN}')
    A('.p2align 8')
    A(f'.type {KN},@function')
    A(f'{KN}:')
    A('  s_load_dwordx16 s[4:19], s[0:1], 0')
    A(f'  s_cmp_ge_u32 s2, {NWG}')
    A('  s_cbranch_scc1 L_end')
    if stamps or dbg:
        A('  s_load_dwordx2 s[72:73], s[0:1], 64')
        A('  s_memrealtime s[60:61]')
        A('  s_memtime s[62:63]')
    A('  s_and_b32 s20, s2, 7')
    A('  s_lshr_b32 s21, s2, 3')
    A('  s_mul_i32 s22, s20, 31')
    A('  s_min_u32 s23, s20, 4')
    A('  s_add_u32 s22, s22, s23')
    A('  s_add_u32 s22, s22, s21')
    A('  s_mul_i32 s23, s22, 57')
    A('  s_lshr_b32 s23, s23, 9')
    A('  s_mul_i32 s24, s23, 9')
    A('  s_sub_u32 s24, s22, s24')
    A(f'  s_cmp_ge_u32 s23, {NSTRIP}')
    A('  s_cselect_b32 s25, 1, 0')
    A(f'  s_mul_i32 s26, s25, {NSTRIP}')
    A('  s_sub_u32 s26, s23, s26')
    A(f'  s_mul_i32 s27, s26, {H_STD}')
    A(f'  s_mov_b32 s28, {H_STD}')
    A(f'  s_cmp_eq_u32 s26, {NSTRIP - 1}')
    A(f'  s_cselect_b32 s28, {H_LAST}, s28')
    A('  v_lshrrev_b32 v1, 6, v0')
    A('  v_and_b32 v0, 63, v0')
    A('  s_nop 1')
    A('  v_readfirstlane_b32 s29, v1')
    A('  s_waitcnt lgkmcnt(0)')
    A('  s_cmp_ge_u32 s29, 4')
    A('  s_cbranch_scc1 L_loader')

    ACC = 8
    XF = [48, 116]
    WF = [104, 172]
    XA = [184, 191]
    WA = [198, 199]
    SC = 200
    SH = 204
    T0 = 208
    VO = 228
    NVG = 232

    A('  s_lshl_b32 s30, s24, 7')
    A('  s_lshl_b32 s31, s29, 5')
    A('  s_add_u32 s30, s30, s31')
    A('  v_lshrrev_b32 v2, 4, v0')
    A('  v_lshlrev_b32 v4, 3, v2')
    A('  v_add_u32 v4, s30, v4')
    for i, base in enumerate((8, 10, 12, 14)):
        sr = 36 + 4 * i
        A(f'  s_mov_b32 s{sr}, s{base}')
        A(f'  s_mov_b32 s{sr + 1}, s{base + 1}')
        A(f'  s_mov_b32 s{sr + 2}, {576 * 2}')
        A(f'  s_mov_b32 s{sr + 3}, 0x00020000')
    for i in range(4):
        sr = 36 + 4 * i
        A(f'  buffer_load_dwordx2 v[{T0 + 2 * i}:{T0 + 2 * i + 1}], v4, s[{sr}:{sr + 3}], 0 offen')
    A('  v_and_b32 v1, 15, v0')
    A('  v_lshlrev_b32 v3, 2, v1')
    A('  v_add_u32 v3, v3, v1')
    for q in range(-1, 6):
        A(f'  v_add_u32 v4, {q + 1}, v3')
        A('  v_and_b32 v5, 7, v4')
        A('  v_xor_b32 v5, v5, v2')
        A('  v_lshlrev_b32 v5, 4, v5')
        A('  v_lshlrev_b32 v4, 7, v4')
        A(f'  v_add_u32 v{XA[0] + q + 1}, v4, v5')
        A(f'  v_xor_b32 v{XA[1] + q + 1}, 64, v{XA[0] + q + 1}')
    A('  v_lshrrev_b32 v4, 2, v1')
    A('  v_and_b32 v5, 3, v0')
    A('  v_lshrrev_b32 v6, 1, v4')
    A('  v_and_b32 v6, 1, v6')
    A('  v_and_b32 v7, 1, v2')
    A('  v_lshlrev_b32 v7, 1, v7')
    A('  v_or_b32 v6, v6, v7')
    A('  v_xor_b32 v6, s29, v6')
    A('  v_lshlrev_b32 v6, 5, v6')
    A('  v_lshlrev_b32 v7, 3, v2')
    A('  v_add_u32 v7, v7, v4')
    A('  v_lshlrev_b32 v7, 7, v7')
    A('  v_add_u32 v6, v6, v7')
    A('  v_lshlrev_b32 v5, 3, v5')
    A('  v_add_u32 v6, v6, v5')
    A(f'  v_add_u32 v{WA[0]}, {WB0}, v6')
    A(f'  v_add_u32 v{WA[1]}, {WB0 + 4096}, v6')
    A(f'  v_mul_u32_u24 v4, {PITCH}, v3')
    A('  v_lshlrev_b32 v5, 3, v2')
    A('  v_add_u32 v4, v4, v5')
    A('  s_lshl_b32 s30, s29, 5')
    A(f'  v_add_u32 v{VO}, s30, v4')
    A('  s_lshl_b32 s30, s25, 11')
    A('  s_add_u32 s30, s30, s27')
    A(f'  s_mul_i32 s30, s30, {PITCH}')
    A('  s_lshl_b32 s31, s24, 7')
    A('  s_add_u32 s30, s30, s31')
    A('  s_add_u32 s32, s16, s30')
    A('  s_addc_u32 s33, s17, 0')
    A(f'  s_mul_i32 s34, s28, {PITCH}')
    A(f'  s_sub_u32 s34, s34, {PITCH - 128}')
    A('  s_mov_b32 s35, 0x00020000')
    for i in range(40):
        A(f'  v_mov_b32 v{ACC + i}, 0')
    A('  s_waitcnt vmcnt(0)')

    def unpack(src, dst):
        A(f'  v_lshlrev_b32 v{dst}, 16, v{src}')
        A(f'  v_and_b32 v{dst + 1}, 0xffff0000, v{src}')
        A(f'  v_lshlrev_b32 v{dst + 2}, 16, v{src + 1}')
        A(f'  v_and_b32 v{dst + 3}, 0xffff0000, v{src + 1}')
    unpack(T0 + 0, T0 + 8)
    unpack(T0 + 2, T0 + 12)
    unpack(T0 + 4, T0 + 16)
    unpack(T0 + 6, SH)
    A('  v_mov_b32 v1, 0x3727c5ac')

    def rbf16(reg):
        A(f'  v_cvt_pk_bf16_f32 v{reg}, v{reg}, v{reg}')
        A(f'  v_lshlrev_b32 v{reg}, 16, v{reg}')
    for j in range(4):
        v = T0 + 12 + j
        A(f'  v_add_f32 v{v}, v{v}, v1')
        rbf16(v)
        A(f'  v_sqrt_f32 v{v}, v{v}')
        A('  s_nop 0')
        rbf16(v)
        A(f'  v_rcp_f32 v{v}, v{v}')
        A('  s_nop 0')
        rbf16(v)
        A(f'  v_mul_f32 v{v}, v{T0 + 16 + j}, v{v}')
        rbf16(v)
        A(f'  v_mov_b32 v{SC + j}, v{v}')
        A(f'  v_mul_f32 v{T0 + 8 + j}, v{T0 + 8 + j}, v{v}')
        A(f'  v_sub_f32 v{SH + j}, v{SH + j}, v{T0 + 8 + j}')

    def reads(p, kk):
        R = []
        for t in range(3):
            for j in range(2):
                R.append(f'  ds_read_b64_tr_b16 v[{WF[p] + 4 * t + 2 * j}:{WF[p] + 4 * t + 2 * j + 1}], v{WA[kk]} offset:{t * 8192 + j * 512}')
        for ga in range(2):
            for q in range(-1, 6):
                d = XF[p] + (ga * 7 + q + 1) * 4
                R.append(f'  ds_read_b128 v[{d}:{d + 3}], v{XA[kk] + q + 1} offset:{ga * 10240}')
        return R

    def mfmas(p):
        M = []
        for t in range(3):
            for ga in range(2):
                for i in range(5):
                    q = i + t - 1
                    a = ACC + (ga * 5 + i) * 4
                    xb = XF[p] + (ga * 7 + q + 1) * 4
                    wb = WF[p] + 4 * t
                    M.append(f'  v_mfma_f32_16x16x32_bf16 v[{a}:{a + 3}], v[{wb}:{wb + 3}], v[{xb}:{xb + 3}], v[{a}:{a + 3}]')
        return M

    def adv(kk, sx, sw):
        return [f'  v_add_u32 v{XA[kk] + i}, {sx}, v{XA[kk] + i}' for i in range(7)] + [f'  v_add_u32 v{WA[kk]}, {sw}, v{WA[kk]}']

    def chunk(p, R, V):
        M = mfmas(p)
        extra = list(R) + list(V)
        for k, m in enumerate(M):
            if not nomfma:
                A(m)
                if k < len(extra):
                    A(extra[k])

    A('  s_mov_b32 s52, 0')
    A('  s_mov_b32 s53, 0')
    A('  s_barrier')
    if stamps or dbg:
        A('  s_memtime s[64:65]')
    for r in reads(0, 0):
        A(r)
    for v in adv(0, XBUF, WBUF):
        A(v)
    A('L_cloop:')
    A(f'  s_mov_b32 s54, {XBUF}')
    A(f'  s_mov_b32 s56, {WBUF}')
    A('  s_cmp_eq_u32 s53, 2')
    A(f'  s_cselect_b32 s54, {-2 * XBUF}, s54')
    A(f'  s_cselect_b32 s56, {-2 * WBUF}, s56')
    A(f'  s_mov_b32 s55, {XBUF}')
    A(f'  s_mov_b32 s57, {WBUF}')
    A('  s_cmp_eq_u32 s53, 1')
    A(f'  s_cselect_b32 s55, {-2 * XBUF}, s55')
    A(f'  s_cselect_b32 s57, {-2 * WBUF}, s57')
    A('  s_waitcnt lgkmcnt(0)')
    chunk(0, reads(1, 1), [])
    A('  s_waitcnt lgkmcnt(0)')
    A('  s_barrier')
    chunk(1, reads(0, 0), adv(1, 's54', 's56'))
    for v in adv(0, 's55', 's57'):
        A(v)
    A('  s_add_u32 s53, s53, 1')
    A('  s_cmp_eq_u32 s53, 3')
    A('  s_cselect_b32 s53, 0, s53')
    A('  s_add_u32 s52, s52, 1')
    A(f'  s_cmp_lt_u32 s52, {NSTAGE}')
    A('  s_cbranch_scc1 L_cloop')
    if stamps or dbg:
        A('  s_memtime s[66:67]')
    A('  s_nop 7')
    A('  s_nop 7')
    A('  v_mov_b32 v1, 0xbfb8aa3b')
    for ga in range(2):
        for i in range(5):
            a = ACC + (ga * 5 + i) * 4
            tt = T0 + ((ga * 5 + i) % 2) * 10
            for j in range(4):
                A(f'  v_fma_f32 v{a + j}, v{a + j}, v{SC + j}, v{SH + j}')
            for j in range(4):
                A(f'  v_mul_f32 v{tt + j}, v{a + j}, v1')
            for j in range(4):
                A(f'  v_exp_f32 v{tt + j}, v{tt + j}')
            for j in range(4):
                A(f'  v_add_f32 v{tt + j}, 1.0, v{tt + j}')
            for j in range(4):
                A(f'  v_rcp_f32 v{tt + j}, v{tt + j}')
            for j in range(4):
                A(f'  v_mul_f32 v{tt + j}, v{a + j}, v{tt + j}')
            A(f'  v_cvt_pk_bf16_f32 v{tt + 4}, v{tt}, v{tt + 1}')
            A(f'  v_cvt_pk_bf16_f32 v{tt + 5}, v{tt + 2}, v{tt + 3}')
            A(f'  s_mov_b32 s30, {(80 * ga + i) * PITCH}')
            A(f'  buffer_store_dwordx2 v[{tt + 4}:{tt + 5}], v{VO}, s[32:35], s30 offen')
    if endwait or stamps or dbg:
        A('  s_waitcnt vmcnt(0)')
    A('  s_branch L_fin' if (stamps or dbg) else '  s_branch L_end')

    A('L_loader:')
    A(f'  s_mul_i32 s30, s25, {XBATCH}')
    A('  s_add_u32 s32, s4, s30')
    A('  s_addc_u32 s33, s5, 0')
    A(f'  s_mov_b32 s34, {XBATCH}')
    A('  s_mov_b32 s35, 0x00020000')
    A('  s_lshl_b32 s30, s24, 7')
    A('  s_add_u32 s36, s6, s30')
    A('  s_addc_u32 s37, s7, 0')
    A(f'  s_sub_u32 s38, {3 * WTAP}, s30')
    A('  s_mov_b32 s39, 0x00020000')
    A(f'  s_mul_i32 s40, s27, {PITCH}')
    A(f'  s_sub_u32 s40, s40, {PITCH}')
    A('  s_cmp_eq_u32 s26, 0')
    A('  s_cselect_b32 s41, 0, s40')
    A('  s_cselect_b32 s42, -1, 0')
    A('  v_lshrrev_b32 v1, 3, v0')
    A('  v_and_b32 v2, 7, v0')
    A(f'  v_mul_u32_u24 v3, {PITCH}, v1')
    A('  v_xor_b32 v4, v2, v1')
    A('  v_lshlrev_b32 v4, 4, v4')
    A('  v_add_u32 v4, v3, v4')
    A(f'  v_subrev_u32 v5, {PITCH}, v4')
    A('  v_mov_b32 v6, 0x40000000')
    A('  v_cmp_gt_u32 vcc, 8, v0')
    A('  v_cndmask_b32 v5, v5, v6, vcc')
    A('  v_mov_b32 v6, s42')
    A('  v_cmp_ne_u32 vcc, 0, v6')
    A('  v_cndmask_b32 v5, v4, v5, vcc')
    A('  v_lshrrev_b32 v6, 1, v1')
    A('  v_and_b32 v6, 1, v6')
    A('  v_lshrrev_b32 v7, 1, v2')
    A('  v_xor_b32 v8, v7, v6')
    A('  v_xor_b32 v9, 2, v8')
    A('  v_and_b32 v10, 1, v2')
    A('  v_lshlrev_b32 v8, 5, v8')
    A('  v_lshlrev_b32 v9, 5, v9')
    A('  v_lshlrev_b32 v10, 4, v10')
    A('  v_add_u32 v8, v8, v10')
    A('  v_add_u32 v9, v9, v10')
    A('  v_add_u32 v6, v3, v8')
    A('  v_add_u32 v7, v3, v9')
    if pd is not None:
        A('  s_mul_i32 s30, s21, 54')
        A('  v_add_u32 v11, s30, v0')
        A('  v_mul_u32_u24 v12, 57, v11')
        A('  v_lshrrev_b32 v12, 9, v12')
        A('  v_mul_u32_u24 v13, 9, v12')
        A('  v_sub_u32 v13, v11, v13')
        A('  v_lshrrev_b32 v14, 6, v12')
        A('  v_and_b32 v15, 63, v12')
        A(f'  v_mul_u32_u24 v14, {WTAP // 16}, v14')
        A('  v_lshlrev_b32 v14, 4, v14')
        A(f'  v_mul_u32_u24 v15, {PITCH}, v15')
        A('  v_lshlrev_b32 v13, 7, v13')
        A('  v_add_u32 v14, v14, v15')
        A('  v_add_u32 v14, v14, v13')
        A('  v_cmp_gt_u32 vcc, 54, v0')
        A('  v_mov_b32 v15, 0x40000000')
        A('  v_cndmask_b32 v11, v15, v14, vcc')
        A('  s_mul_i32 s30, s24, 17')
        A('  v_add_u32 v12, s30, v0')
        A(f'  v_mul_u32_u24 v12, {PITCH}, v12')
        A('  v_cmp_gt_u32 vcc, 17, v0')
        A('  v_cndmask_b32 v12, v15, v12, vcc')
        A('  s_mov_b32 s80, s6')
        A('  s_mov_b32 s81, s7')
        A(f'  s_mov_b32 s82, {3 * WTAP}')
        A('  s_mov_b32 s83, 0x00020000')

    ops = [('x', k) for k in range(XK)] + [('w', (t, h)) for t in range(3) for h in range(8)]

    def emit_dma(op):
        kind, idx = op
        if nodma:
            return
        if kind == 'x':
            k = idx
            A(f'  s_add_u32 m0, s48, {k * 1024}')
            if k == 0:
                A('  s_add_u32 s44, s41, s46')
                A('  buffer_load_dwordx4 v5, s[32:35], s44 offen lds')
            else:
                A(f'  s_add_u32 s44, s51, {k * 8 * PITCH}')
                A('  buffer_load_dwordx4 v4, s[32:35], s44 offen lds')
        else:
            t, h = idx
            A(f'  s_add_u32 m0, s49, {(t * 8 + h) * 1024}')
            A(f'  s_add_u32 s44, s47, {t * WTAP + 8 * h * PITCH}')
            A(f'  buffer_load_dwordx4 v{6 + (h & 1)}, s[36:39], s44 offen lds')

    for lw in range(NL):
        if lw + 1 < NL:
            A(f'  s_cmp_lg_u32 s29, {4 + lw}')
            A(f'  s_cbranch_scc1 L_loader{lw + 1}')
        my = ops[lw::NL]
        n = len(my)
        npf = 1 if (pd is not None and lw < 2) else 0
        A('  s_mov_b32 s45, 0')
        A('  s_mov_b32 s46, 0')
        A('  s_mov_b32 s47, 0')
        A('  s_mov_b32 s50, 0')
        A(f'L_lloop{lw}:')
        A(f'  s_mul_i32 s48, s50, {XBUF}')
        A(f'  s_mul_i32 s49, s50, {WBUF}')
        A(f'  s_add_u32 s49, s49, {WB0}')
        A('  s_add_u32 s51, s40, s46')
        for op in my:
            emit_dma(op)
        if npf:
            A(f'  s_cmp_gt_u32 s45, {NSTAGE - 1 - pd}')
            if lw == 0:
                A(f'  s_add_u32 s44, s47, {pd * 64 * PITCH}')
                A('  s_cselect_b32 s44, 0x40000000, s44')
                A('  buffer_load_dword v20, v11, s[80:83], s44 offen')
            else:
                A(f'  s_add_u32 s44, s51, {PITCH + pd * 128}')
                A('  s_cselect_b32 s44, 0x40000000, s44')
                A('  buffer_load_dword v20, v12, s[32:35], s44 offen')
        if stamps:
            A('  s_cmp_lg_u32 s45, 2')
            A(f'  s_cbranch_scc1 L_ns{lw}')
            A('  s_memtime s[64:65]')
            A(f'L_ns{lw}:')
        A('  s_cmp_lt_u32 s45, 2')
        A(f'  s_cbranch_scc1 L_lnext{lw}')
        A(f'  s_cbranch_scc0 L_lw{lw}')
        A(f'L_lw{lw}:')
        A('  s_cmp_lg_u32 s45, 2')
        A(f'  s_cbranch_scc1 L_lskip{lw}')
        A(f'  s_waitcnt vmcnt({2 * n + 3 * npf})')
        A('  s_barrier')
        A(f'L_lskip{lw}:')
        A(f'  s_waitcnt vmcnt({n + 2 * npf})')
        A('  s_barrier')
        A(f'L_lnext{lw}:')
        A('  s_add_u32 s45, s45, 1')
        A('  s_add_u32 s46, s46, 128')
        A(f'  s_add_u32 s47, s47, {64 * PITCH}')
        A('  s_add_u32 s50, s50, 1')
        A('  s_cmp_eq_u32 s50, 3')
        A('  s_cselect_b32 s50, 0, s50')
        A(f'  s_cmp_lt_u32 s45, {NSTAGE}')
        A(f'  s_cbranch_scc1 L_lloop{lw}')
        A('  s_waitcnt vmcnt(0)')
        A('  s_barrier')
        A('  s_barrier')
        if stamps:
            A('  s_memtime s[66:67]')
        A('  s_branch L_fin' if stamps else '  s_branch L_end')
        if lw + 1 < NL:
            A(f'L_loader{lw + 1}:')
    if dbg:
        A('L_fin:')
        A('  s_memtime s[68:69]')
        A('  s_memrealtime s[70:71]')
        A('  s_waitcnt lgkmcnt(0)')
        A('  s_mov_b32 s76, s18')
        A('  s_mov_b32 s77, s19')
        A('  s_mov_b32 s78, 256')
        A('  s_mov_b32 s79, 0x00020000')
        A('  s_cmp_lg_u32 s29, 0')
        A('  s_cbranch_scc1 L_end')
        A('  v_mov_b32 v1, 0')
        A('  v_mov_b32 v2, s70')
        A('  s_not_b32 s74, s60')
        A('  v_mov_b32 v3, s74')
        A('  buffer_atomic_umax v2, v1, s[76:79], 0 offen')
        A('  buffer_atomic_umax v3, v1, s[76:79], 0 offen offset:4')
        A('  s_sub_u32 s74, s64, s62')
        A('  s_sub_u32 s75, s66, s64')
        A('  s_sub_u32 s73, s68, s66')
        A('  v_mov_b32 v4, s74')
        A('  v_mov_b32 v5, s75')
        A('  v_mov_b32 v6, s73')
        A('  s_cmp_lg_u32 s2, 0')
        A('  s_cbranch_scc1 L_d1')
        A('  buffer_store_dwordx3 v[4:6], v1, s[76:79], 0 offen offset:16')
        A('L_d1:')
        A('  s_cmp_lg_u32 s2, 131')
        A('  s_cbranch_scc1 L_d2')
        A('  buffer_store_dwordx3 v[4:6], v1, s[76:79], 0 offen offset:32')
        A('L_d2:')
        A('  s_waitcnt vmcnt(0)')
    elif stamps:
        A('L_fin:')
        A('  s_memtime s[68:69]')
        A('  s_memrealtime s[70:71]')
        A('  s_waitcnt lgkmcnt(0)')
        A('  s_mov_b32 s76, s72')
        A('  s_mov_b32 s77, s73')
        A('  s_mov_b32 s78, 0x100000')
        A('  s_mov_b32 s79, 0x00020000')
        A(f'  s_mul_i32 s74, s2, {4 + NL}')
        A('  s_add_u32 s74, s74, s29')
        A('  s_lshl_b32 s74, s74, 6')
        A('  v_mov_b32 v1, s74')
        for i, sr in enumerate((60, 62, 64, 66, 68, 70)):
            A(f'  v_mov_b32 v{4 + i}, s{sr}')
        A('  v_mov_b32 v10, s29')
        A('  v_mov_b32 v11, s2')
        A('  buffer_store_dwordx4 v[4:7], v1, s[76:79], 0 offen')
        A('  buffer_store_dwordx4 v[8:11], v1, s[76:79], 0 offen offset:16')
        A('  s_waitcnt vmcnt(0)')
    A('L_end:')
    A('s_endpgm')
    A('.section .rodata,"a"')
    A('.p2align 6')
    A(f'.amdhsa_kernel {KN}')
    A(f'  .amdhsa_next_free_vgpr {NVG}')
    A('  .amdhsa_next_free_sgpr 102')
    A(f'  .amdhsa_accum_offset {NVG}')
    A('  .amdhsa_group_segment_fixed_size 0')
    A('  .amdhsa_kernarg_size 72')
    A('  .amdhsa_user_sgpr_count 2')
    A('  .amdhsa_user_sgpr_kernarg_segment_ptr 1')
    A('  .amdhsa_system_sgpr_workgroup_id_x 1')
    A('.end_amdhsa_kernel')
    open(out, 'w').write('\n'.join(L) + '\n')


if __name__ == '__main__':
    if len(sys.argv) > 1 and sys.argv[1] == 'bench':
        gen(out='c_base.s', stamps=True)
        gen(out='c_pd2.s', stamps=True, pd=2)
        gen(out='c_pd4.s', stamps=True, pd=4)
    elif len(sys.argv) > 1 and sys.argv[1] == 'dbg':
        gen(dbg=True)
    else:
        gen()
```

```python
import sys, os

REF = 'standalone__batchnorm__prompt.s.ref'
OUT = 'standalone__batchnorm__prompt.s'
KN = 'standalone__batchnorm__prompt_kernel'

PITCH = 1152
XBATCH = 2048 * PITCH
WTAP = 576 * PITCH
NSTAGE = 9
H_STD, H_LAST = 147, 137
NSTRIP = 14
NWG = 2 * NSTRIP * 9
XK = 19
XBUF = 162 * 128
WBUF = 192 * 128
WB0 = 3 * XBUF
LDS_TOTAL = 3 * XBUF + 3 * WBUF


def gen(out=OUT, NL=2, stamps=False, nomfma=False, nodma=False, pd=None, endwait=False, dbg=False, xpol='', wpol='', nostore=False, ldsst=False):
    L = []
    A = L.append
    for line in open(REF).read().split('\n'):
        if line.startswith('; @launch'):
            A(f'; @launch grid=({NWG},1,1) block=({64 * (4 + NL)},1,1) lds={LDS_TOTAL}')
        elif line.startswith(';'):
            A(line)
        else:
            break
    A('.amdgcn_target "amdgcn-amd-amdhsa--gfx950"')
    A('.text')
    A(f'.globl {KN}')
    A('.p2align 8')
    A(f'.type {KN},@function')
    A(f'{KN}:')
    A('  s_load_dwordx16 s[4:19], s[0:1], 0')
    A(f'  s_cmp_ge_u32 s2, {NWG}')
    A('  s_cbranch_scc1 L_end')
    if stamps or dbg:
        A('  s_load_dwordx2 s[72:73], s[0:1], 64')
        A('  s_memrealtime s[60:61]')
        A('  s_memtime s[62:63]')
    A('  s_and_b32 s20, s2, 7')
    A('  s_lshr_b32 s21, s2, 3')
    A('  s_mul_i32 s22, s20, 31')
    A('  s_min_u32 s23, s20, 4')
    A('  s_add_u32 s22, s22, s23')
    A('  s_add_u32 s22, s22, s21')
    A('  s_mul_i32 s23, s22, 57')
    A('  s_lshr_b32 s23, s23, 9')
    A('  s_mul_i32 s24, s23, 9')
    A('  s_sub_u32 s24, s22, s24')
    A(f'  s_cmp_ge_u32 s23, {NSTRIP}')
    A('  s_cselect_b32 s25, 1, 0')
    A(f'  s_mul_i32 s26, s25, {NSTRIP}')
    A('  s_sub_u32 s26, s23, s26')
    A(f'  s_mul_i32 s27, s26, {H_STD}')
    A(f'  s_mov_b32 s28, {H_STD}')
    A(f'  s_cmp_eq_u32 s26, {NSTRIP - 1}')
    A(f'  s_cselect_b32 s28, {H_LAST}, s28')
    A('  v_lshrrev_b32 v1, 6, v0')
    A('  v_and_b32 v0, 63, v0')
    A('  s_nop 1')
    A('  v_readfirstlane_b32 s29, v1')
    A('  s_waitcnt lgkmcnt(0)')
    A('  s_cmp_ge_u32 s29, 4')
    A('  s_cbranch_scc1 L_loader')

    ACC = 8
    XF = [48, 116]
    WF = [104, 172]
    XA = [184, 191]
    WA = [198, 199]
    SC = 200
    SH = 204
    T0 = 208
    VO = 228
    VW = 232
    VR = 237
    VS = 238
    NVG = 240 if ldsst else 232

    A('  s_lshl_b32 s30, s24, 7')
    A('  s_lshl_b32 s31, s29, 5')
    A('  s_add_u32 s30, s30, s31')
    A('  v_lshrrev_b32 v2, 4, v0')
    A('  v_lshlrev_b32 v4, 3, v2')
    A('  v_add_u32 v4, s30, v4')
    for i, base in enumerate((8, 10, 12, 14)):
        sr = 36 + 4 * i
        A(f'  s_mov_b32 s{sr}, s{base}')
        A(f'  s_mov_b32 s{sr + 1}, s{base + 1}')
        A(f'  s_mov_b32 s{sr + 2}, {576 * 2}')
        A(f'  s_mov_b32 s{sr + 3}, 0x00020000')
    for i in range(4):
        sr = 36 + 4 * i
        A(f'  buffer_load_dwordx2 v[{T0 + 2 * i}:{T0 + 2 * i + 1}], v4, s[{sr}:{sr + 3}], 0 offen')
    A('  v_and_b32 v1, 15, v0')
    A('  v_lshlrev_b32 v3, 2, v1')
    A('  v_add_u32 v3, v3, v1')
    for q in range(-1, 6):
        A(f'  v_add_u32 v4, {q + 1}, v3')
        A('  v_and_b32 v5, 7, v4')
        A('  v_xor_b32 v5, v5, v2')
        A('  v_lshlrev_b32 v5, 4, v5')
        A('  v_lshlrev_b32 v4, 7, v4')
        A(f'  v_add_u32 v{XA[0] + q + 1}, v4, v5')
        A(f'  v_xor_b32 v{XA[1] + q + 1}, 64, v{XA[0] + q + 1}')
    A('  v_lshrrev_b32 v4, 2, v1')
    A('  v_and_b32 v5, 3, v0')
    A('  v_lshrrev_b32 v6, 1, v4')
    A('  v_and_b32 v6, 1, v6')
    A('  v_and_b32 v7, 1, v2')
    A('  v_lshlrev_b32 v7, 1, v7')
    A('  v_or_b32 v6, v6, v7')
    A('  v_xor_b32 v6, s29, v6')
    A('  v_lshlrev_b32 v6, 5, v6')
    A('  v_lshlrev_b32 v7, 3, v2')
    A('  v_add_u32 v7, v7, v4')
    A('  v_lshlrev_b32 v7, 7, v7')
    A('  v_add_u32 v6, v6, v7')
    A('  v_lshlrev_b32 v5, 3, v5')
    A('  v_add_u32 v6, v6, v5')
    A(f'  v_add_u32 v{WA[0]}, {WB0}, v6')
    A(f'  v_add_u32 v{WA[1]}, {WB0 + 4096}, v6')
    A(f'  v_mul_u32_u24 v4, {PITCH}, v3')
    A('  v_lshlrev_b32 v5, 3, v2')
    A('  v_add_u32 v4, v4, v5')
    A('  s_lshl_b32 s30, s29, 5')
    A(f'  v_add_u32 v{VO}, s30, v4')
    A('  s_lshl_b32 s30, s25, 11')
    A('  s_add_u32 s30, s30, s27')
    A(f'  s_mul_i32 s30, s30, {PITCH}')
    A('  s_lshl_b32 s31, s24, 7')
    A('  s_add_u32 s30, s30, s31')
    A('  s_add_u32 s32, s16, s30')
    A('  s_addc_u32 s33, s17, 0')
    A(f'  s_mul_i32 s34, s28, {PITCH}')
    A(f'  s_sub_u32 s34, s34, {PITCH - 128}')
    A('  s_mov_b32 s35, 0x00020000')
    if ldsst:
        A('  s_lshl_b32 s30, s29, 1')
        A('  v_lshrrev_b32 v4, 1, v2')
        A('  v_add_u32 v4, s30, v4')
        A('  v_and_b32 v5, 1, v2')
        A('  v_lshlrev_b32 v5, 3, v5')
        for i in range(5):
            A(f'  v_add_u32 v6, {i}, v3')
            A('  v_and_b32 v7, 7, v6')
            A('  v_xor_b32 v7, v7, v4')
            A('  v_lshlrev_b32 v7, 4, v7')
            A('  v_lshlrev_b32 v6, 7, v6')
            A('  v_add_u32 v6, v6, v7')
            A(f'  v_add_u32 v{VW + i}, v6, v5')
        A('  s_lshl_b32 s30, s29, 10')
        A('  v_lshlrev_b32 v4, 4, v0')
        A(f'  v_add_u32 v{VR}, s30, v4')
        A('  v_lshrrev_b32 v4, 3, v0')
        A('  v_and_b32 v5, 7, v0')
        A('  v_xor_b32 v5, v5, v4')
        A('  v_lshlrev_b32 v5, 4, v5')
        A('  s_lshl_b32 s30, s29, 3')
        A('  v_add_u32 v4, s30, v4')
        A(f'  v_mul_u32_u24 v4, {PITCH}, v4')
        A(f'  v_add_u32 v{VS}, v4, v5')
    for i in range(40):
        A(f'  v_mov_b32 v{ACC + i}, 0')
    A('  s_waitcnt vmcnt(0)')

    def unpack(src, dst):
        A(f'  v_lshlrev_b32 v{dst}, 16, v{src}')
        A(f'  v_and_b32 v{dst + 1}, 0xffff0000, v{src}')
        A(f'  v_lshlrev_b32 v{dst + 2}, 16, v{src + 1}')
        A(f'  v_and_b32 v{dst + 3}, 0xffff0000, v{src + 1}')
    unpack(T0 + 0, T0 + 8)
    unpack(T0 + 2, T0 + 12)
    unpack(T0 + 4, T0 + 16)
    unpack(T0 + 6, SH)
    A('  v_mov_b32 v1, 0x3727c5ac')

    def rbf16(reg):
        A(f'  v_cvt_pk_bf16_f32 v{reg}, v{reg}, v{reg}')
        A(f'  v_lshlrev_b32 v{reg}, 16, v{reg}')
    for j in range(4):
        v = T0 + 12 + j
        A(f'  v_add_f32 v{v}, v{v}, v1')
        rbf16(v)
        A(f'  v_sqrt_f32 v{v}, v{v}')
        A('  s_nop 0')
        rbf16(v)
        A(f'  v_rcp_f32 v{v}, v{v}')
        A('  s_nop 0')
        rbf16(v)
        A(f'  v_mul_f32 v{v}, v{T0 + 16 + j}, v{v}')
        rbf16(v)
        A(f'  v_mov_b32 v{SC + j}, v{v}')
        A(f'  v_mul_f32 v{T0 + 8 + j}, v{T0 + 8 + j}, v{v}')
        A(f'  v_sub_f32 v{SH + j}, v{SH + j}, v{T0 + 8 + j}')

    def reads(p, kk):
        R = []
        for t in range(3):
            for j in range(2):
                R.append(f'  ds_read_b64_tr_b16 v[{WF[p] + 4 * t + 2 * j}:{WF[p] + 4 * t + 2 * j + 1}], v{WA[kk]} offset:{t * 8192 + j * 512}')
        for ga in range(2):
            for q in range(-1, 6):
                d = XF[p] + (ga * 7 + q + 1) * 4
                R.append(f'  ds_read_b128 v[{d}:{d + 3}], v{XA[kk] + q + 1} offset:{ga * 10240}')
        return R

    def mfmas(p):
        M = []
        for t in range(3):
            for ga in range(2):
                for i in range(5):
                    q = i + t - 1
                    a = ACC + (ga * 5 + i) * 4
                    xb = XF[p] + (ga * 7 + q + 1) * 4
                    wb = WF[p] + 4 * t
                    M.append(f'  v_mfma_f32_16x16x32_bf16 v[{a}:{a + 3}], v[{wb}:{wb + 3}], v[{xb}:{xb + 3}], v[{a}:{a + 3}]')
        return M

    def adv(kk, sx, sw):
        return [f'  v_add_u32 v{XA[kk] + i}, {sx}, v{XA[kk] + i}' for i in range(7)] + [f'  v_add_u32 v{WA[kk]}, {sw}, v{WA[kk]}']

    def chunk(p, R, V):
        M = mfmas(p)
        extra = list(R) + list(V)
        for k, m in enumerate(M):
            if not nomfma:
                A(m)
                if k < len(extra):
                    A(extra[k])

    A('  s_mov_b32 s52, 0')
    A('  s_mov_b32 s53, 0')
    A('  s_barrier')
    if stamps or dbg:
        A('  s_memtime s[64:65]')
    for r in reads(0, 0):
        A(r)
    A('L_cloop:')
    A(f'  s_mov_b32 s54, {XBUF}')
    A(f'  s_mov_b32 s56, {WBUF}')
    A('  s_cmp_eq_u32 s53, 2')
    A(f'  s_cselect_b32 s54, {-2 * XBUF}, s54')
    A(f'  s_cselect_b32 s56, {-2 * WBUF}, s56')
    A('  s_waitcnt lgkmcnt(0)')
    chunk(0, reads(1, 1), adv(0, 's54', 's56'))
    A('  s_waitcnt lgkmcnt(0)')
    A('  s_barrier')
    chunk(1, reads(0, 0), adv(1, 's54', 's56') + ['  s_add_u32 s53, s53, 1', '  s_cmp_eq_u32 s53, 3', '  s_cselect_b32 s53, 0, s53'][:2])
    A('  s_cselect_b32 s53, 0, s53')
    A('  s_add_u32 s52, s52, 1')
    A(f'  s_cmp_lt_u32 s52, {NSTAGE}')
    A('  s_cbranch_scc1 L_cloop')
    if stamps or dbg:
        A('  s_memtime s[66:67]')
    A('  s_nop 7')
    A('  s_nop 7')
    A('  v_mov_b32 v1, 0xbfb8aa3b')
    for ga in range(2):
        for i in range(5):
            a = ACC + (ga * 5 + i) * 4
            tt = T0 + ((ga * 5 + i) % 2) * 10
            for j in range(4):
                A(f'  v_fma_f32 v{a + j}, v{a + j}, v{SC + j}, v{SH + j}')
            for j in range(4):
                A(f'  v_mul_f32 v{tt + j}, v{a + j}, v1')
            for j in range(4):
                A(f'  v_exp_f32 v{tt + j}, v{tt + j}')
            for j in range(4):
                A(f'  v_add_f32 v{tt + j}, 1.0, v{tt + j}')
            for j in range(4):
                A(f'  v_rcp_f32 v{tt + j}, v{tt + j}')
            for j in range(4):
                A(f'  v_mul_f32 v{tt + j}, v{a + j}, v{tt + j}')
            A(f'  v_cvt_pk_bf16_f32 v{tt + 4}, v{tt}, v{tt + 1}')
            A(f'  v_cvt_pk_bf16_f32 v{tt + 5}, v{tt + 2}, v{tt + 3}')
            if ldsst:
                A(f'  ds_write_b64 v{VW + i}, v[{tt + 4}:{tt + 5}] offset:{XBUF + 80 * ga * 128}')
            else:
                A(f'  s_mov_b32 s30, {(80 * ga + i) * PITCH}')
                if not nostore:
                    A(f'  buffer_store_dwordx2 v[{tt + 4}:{tt + 5}], v{VO}, s[32:35], s30 offen')
    if ldsst:
        A('  s_waitcnt lgkmcnt(0)')
        A('  s_barrier')
        for k in range(5):
            A(f'  ds_read_b128 v[{XF[0] + 4 * k}:{XF[0] + 4 * k + 3}], v{VR} offset:{XBUF + k * 4096}')
        for k in range(5):
            A(f'  s_waitcnt lgkmcnt({4 - k})')
            A(f'  s_mov_b32 s30, {k * 32 * PITCH}')
            A(f'  buffer_store_dwordx4 v[{XF[0] + 4 * k}:{XF[0] + 4 * k + 3}], v{VS}, s[32:35], s30 offen')
    if endwait or stamps or dbg:
        A('  s_waitcnt vmcnt(0)')
    A('  s_branch L_fin' if (stamps or dbg) else '  s_branch L_end')

    A('L_loader:')
    A(f'  s_mul_i32 s30, s25, {XBATCH}')
    A('  s_add_u32 s32, s4, s30')
    A('  s_addc_u32 s33, s5, 0')
    A(f'  s_mov_b32 s34, {XBATCH}')
    A('  s_mov_b32 s35, 0x00020000')
    A('  s_lshl_b32 s30, s24, 7')
    A('  s_add_u32 s36, s6, s30')
    A('  s_addc_u32 s37, s7, 0')
    A(f'  s_sub_u32 s38, {3 * WTAP}, s30')
    A('  s_mov_b32 s39, 0x00020000')
    A(f'  s_mul_i32 s40, s27, {PITCH}')
    A(f'  s_sub_u32 s40, s40, {PITCH}')
    A('  s_cmp_eq_u32 s26, 0')
    A('  s_cselect_b32 s41, 0, s40')
    A('  s_cselect_b32 s42, -1, 0')
    A('  v_lshrrev_b32 v1, 3, v0')
    A('  v_and_b32 v2, 7, v0')
    A(f'  v_mul_u32_u24 v3, {PITCH}, v1')
    A('  v_xor_b32 v4, v2, v1')
    A('  v_lshlrev_b32 v4, 4, v4')
    A('  v_add_u32 v4, v3, v4')
    A(f'  v_subrev_u32 v5, {PITCH}, v4')
    A('  v_mov_b32 v6, 0x40000000')
    A('  v_cmp_gt_u32 vcc, 8, v0')
    A('  v_cndmask_b32 v5, v5, v6, vcc')
    A('  v_mov_b32 v6, s42')
    A('  v_cmp_ne_u32 vcc, 0, v6')
    A('  v_cndmask_b32 v5, v4, v5, vcc')
    A('  v_lshrrev_b32 v6, 1, v1')
    A('  v_and_b32 v6, 1, v6')
    A('  v_lshrrev_b32 v7, 1, v2')
    A('  v_xor_b32 v8, v7, v6')
    A('  v_xor_b32 v9, 2, v8')
    A('  v_and_b32 v10, 1, v2')
    A('  v_lshlrev_b32 v8, 5, v8')
    A('  v_lshlrev_b32 v9, 5, v9')
    A('  v_lshlrev_b32 v10, 4, v10')
    A('  v_add_u32 v8, v8, v10')
    A('  v_add_u32 v9, v9, v10')
    A('  v_add_u32 v6, v3, v8')
    A('  v_add_u32 v7, v3, v9')
    if pd is not None:
        A('  s_mul_i32 s30, s21, 54')
        A('  v_add_u32 v11, s30, v0')
        A('  v_mul_u32_u24 v12, 57, v11')
        A('  v_lshrrev_b32 v12, 9, v12')
        A('  v_mul_u32_u24 v13, 9, v12')
        A('  v_sub_u32 v13, v11, v13')
        A('  v_lshrrev_b32 v14, 6, v12')
        A('  v_and_b32 v15, 63, v12')
        A(f'  v_mul_u32_u24 v14, {WTAP // 16}, v14')
        A('  v_lshlrev_b32 v14, 4, v14')
        A(f'  v_mul_u32_u24 v15, {PITCH}, v15')
        A('  v_lshlrev_b32 v13, 7, v13')
        A('  v_add_u32 v14, v14, v15')
        A('  v_add_u32 v14, v14, v13')
        A('  v_cmp_gt_u32 vcc, 54, v0')
        A('  v_mov_b32 v15, 0x40000000')
        A('  v_cndmask_b32 v11, v15, v14, vcc')
        A('  s_mul_i32 s30, s24, 17')
        A('  v_add_u32 v12, s30, v0')
        A(f'  v_mul_u32_u24 v12, {PITCH}, v12')
        A('  v_cmp_gt_u32 vcc, 17, v0')
        A('  v_cndmask_b32 v12, v15, v12, vcc')
        A('  s_mov_b32 s80, s6')
        A('  s_mov_b32 s81, s7')
        A(f'  s_mov_b32 s82, {3 * WTAP}')
        A('  s_mov_b32 s83, 0x00020000')

    ops = [('x', k) for k in range(XK)] + [('w', (t, h)) for t in range(3) for h in range(8)]

    def emit_dma(op):
        kind, idx = op
        if nodma:
            return
        if kind == 'x':
            k = idx
            A(f'  s_add_u32 m0, s48, {k * 1024}')
            if k == 0:
                A('  s_add_u32 s44, s41, s46')
                A(f'  buffer_load_dwordx4 v5, s[32:35], s44 offen {xpol} lds')
            else:
                A(f'  s_add_u32 s44, s51, {k * 8 * PITCH}')
                A(f'  buffer_load_dwordx4 v4, s[32:35], s44 offen {xpol} lds')
        else:
            t, h = idx
            A(f'  s_add_u32 m0, s49, {(t * 8 + h) * 1024}')
            A(f'  s_add_u32 s44, s47, {t * WTAP + 8 * h * PITCH}')
            A(f'  buffer_load_dwordx4 v{6 + (h & 1)}, s[36:39], s44 offen {wpol} lds')

    for lw in range(NL):
        if lw + 1 < NL:
            A(f'  s_cmp_lg_u32 s29, {4 + lw}')
            A(f'  s_cbranch_scc1 L_loader{lw + 1}')
        my = ops[lw::NL]
        n = len(my)
        npf = 1 if (pd is not None and lw < 2) else 0
        A('  s_mov_b32 s45, 0')
        A('  s_mov_b32 s46, 0')
        A('  s_mov_b32 s47, 0')
        A('  s_mov_b32 s50, 0')
        A(f'L_lloop{lw}:')
        A(f'  s_mul_i32 s48, s50, {XBUF}')
        A(f'  s_mul_i32 s49, s50, {WBUF}')
        A(f'  s_add_u32 s49, s49, {WB0}')
        A('  s_add_u32 s51, s40, s46')
        for op in my:
            emit_dma(op)
        if npf:
            A(f'  s_cmp_gt_u32 s45, {NSTAGE - 1 - pd}')
            if lw == 0:
                A(f'  s_add_u32 s44, s47, {pd * 64 * PITCH}')
                A('  s_cselect_b32 s44, 0x40000000, s44')
                A('  buffer_load_dword v20, v11, s[80:83], s44 offen')
            else:
                A(f'  s_add_u32 s44, s51, {PITCH + pd * 128}')
                A('  s_cselect_b32 s44, 0x40000000, s44')
                A('  buffer_load_dword v20, v12, s[32:35], s44 offen')
        if stamps:
            A('  s_cmp_lg_u32 s45, 2')
            A(f'  s_cbranch_scc1 L_ns{lw}')
            A('  s_memtime s[64:65]')
            A(f'L_ns{lw}:')
        A('  s_cmp_lt_u32 s45, 2')
        A(f'  s_cbranch_scc1 L_lnext{lw}')
        A(f'  s_cbranch_scc0 L_lw{lw}')
        A(f'L_lw{lw}:')
        A('  s_cmp_lg_u32 s45, 2')
        A(f'  s_cbranch_scc1 L_lskip{lw}')
        A(f'  s_waitcnt vmcnt({2 * n + 3 * npf})')
        A('  s_barrier')
        A(f'L_lskip{lw}:')
        A(f'  s_waitcnt vmcnt({n + 2 * npf})')
        if stamps:
            A('  s_memtime s[90:91]')
            A('  s_waitcnt lgkmcnt(0)')
            A('  s_mov_b32 m0, s45')
            A('  s_nop 0')
            A('  v_writelane_b32 v30, s90, m0')
        A('  s_barrier')
        A(f'L_lnext{lw}:')
        A('  s_add_u32 s45, s45, 1')
        A('  s_add_u32 s46, s46, 128')
        A(f'  s_add_u32 s47, s47, {64 * PITCH}')
        A('  s_add_u32 s50, s50, 1')
        A('  s_cmp_eq_u32 s50, 3')
        A('  s_cselect_b32 s50, 0, s50')
        A(f'  s_cmp_lt_u32 s45, {NSTAGE}')
        A(f'  s_cbranch_scc1 L_lloop{lw}')
        A('  s_waitcnt vmcnt(0)')
        A('  s_barrier')
        A('  s_barrier')
        if ldsst:
            A('  s_barrier')
        if stamps:
            A('  s_memtime s[66:67]')
        A('  s_branch L_fin' if stamps else '  s_branch L_end')
        if lw + 1 < NL:
            A(f'L_loader{lw + 1}:')
    if dbg:
        A('L_fin:')
        A('  s_memtime s[68:69]')
        A('  s_memrealtime s[70:71]')
        A('  s_waitcnt lgkmcnt(0)')
        A('  s_mov_b32 s76, s18')
        A('  s_mov_b32 s77, s19')
        A('  s_mov_b32 s78, 256')
        A('  s_mov_b32 s79, 0x00020000')
        A('  s_cmp_lg_u32 s29, 0')
        A('  s_cbranch_scc1 L_end')
        A('  v_mov_b32 v1, 0')
        A('  v_mov_b32 v2, s70')
        A('  s_not_b32 s74, s60')
        A('  v_mov_b32 v3, s74')
        A('  buffer_atomic_umax v2, v1, s[76:79], 0 offen')
        A('  buffer_atomic_umax v3, v1, s[76:79], 0 offen offset:4')
        A('  s_sub_u32 s74, s64, s62')
        A('  s_sub_u32 s75, s66, s64')
        A('  s_sub_u32 s73, s68, s66')
        A('  v_mov_b32 v4, s74')
        A('  v_mov_b32 v5, s75')
        A('  v_mov_b32 v6, s73')
        A('  s_cmp_lg_u32 s2, 0')
        A('  s_cbranch_scc1 L_d1')
        A('  buffer_store_dwordx3 v[4:6], v1, s[76:79], 0 offen offset:16')
        A('L_d1:')
        A('  s_cmp_lg_u32 s2, 131')
        A('  s_cbranch_scc1 L_d2')
        A('  buffer_store_dwordx3 v[4:6], v1, s[76:79], 0 offen offset:32')
        A('L_d2:')
        A('  s_waitcnt vmcnt(0)')
    elif stamps:
        A('L_fin:')
        A('  s_memtime s[68:69]')
        A('  s_memrealtime s[70:71]')
        A('  s_waitcnt lgkmcnt(0)')
        A('  s_mov_b32 s76, s72')
        A('  s_mov_b32 s77, s73')
        A('  s_mov_b32 s78, 0x100000')
        A('  s_mov_b32 s79, 0x00020000')
        A(f'  s_mul_i32 s74, s2, {4 + NL}')
        A('  s_add_u32 s74, s74, s29')
        A('  s_lshl_b32 s74, s74, 6')
        A('  v_mov_b32 v1, s74')
        for i, sr in enumerate((60, 62, 64, 66, 68, 70)):
            A(f'  v_mov_b32 v{4 + i}, s{sr}')
        A('  v_mov_b32 v10, s29')
        A('  v_mov_b32 v11, s2')
        A('  buffer_store_dwordx4 v[4:7], v1, s[76:79], 0 offen')
        A('  buffer_store_dwordx4 v[8:11], v1, s[76:79], 0 offen offset:16')
        A('  s_cmp_lg_u32 s29, 4')
        A('  s_cbranch_scc1 L_fin2')
        A(f'  s_mul_i32 s74, s2, 64')
        A('  s_add_u32 s74, s74, 0x80000')
        A('  v_lshlrev_b32 v1, 2, v0')
        A('  v_add_u32 v1, s74, v1')
        A('  v_cmp_gt_u32 vcc, 16, v0')
        A('  s_and_saveexec_b64 s[92:93], vcc')
        A('  buffer_store_dword v30, v1, s[76:79], 0 offen')
        A('  s_mov_b64 exec, s[92:93]')
        A('L_fin2:')
        A('  s_waitcnt vmcnt(0)')
    A('L_end:')
    A('s_endpgm')
    A('.section .rodata,"a"')
    A('.p2align 6')
    A(f'.amdhsa_kernel {KN}')
    A(f'  .amdhsa_next_free_vgpr {NVG}')
    A('  .amdhsa_next_free_sgpr 102')
    A(f'  .amdhsa_accum_offset {NVG}')
    A('  .amdhsa_group_segment_fixed_size 0')
    A('  .amdhsa_kernarg_size 72')
    A('  .amdhsa_user_sgpr_count 2')
    A('  .amdhsa_user_sgpr_kernarg_segment_ptr 1')
    A('  .amdhsa_system_sgpr_workgroup_id_x 1')
    A('.end_amdhsa_kernel')
    open(out, 'w').write('\n'.join(L) + '\n')


if __name__ == '__main__':
    if len(sys.argv) > 1 and sys.argv[1] == 'bench':
        gen(out='c_base.s', stamps=True)
        gen(out='c_xnt.s', stamps=True, xpol='nt')
        gen(out='c_ldsst.s', stamps=True, xpol='nt', ldsst=True)
        gen(out='c_xnt_pd3.s', stamps=True, xpol='nt', pd=3)
        gen(out='c_xnt_pd5.s', stamps=True, xpol='nt', pd=5)
        gen(out='c_xnt_nl3.s', stamps=True, xpol='nt', NL=3)
        gen(out='c_xnt_nl4.s', stamps=True, xpol='nt', NL=4)
    elif len(sys.argv) > 1 and sys.argv[1] == 'dbg':
        gen(dbg=True)
    else:
        gen(xpol='nt', ldsst=True)
```

```python
import sys, os

REF = 'standalone__batchnorm__prompt.s.ref'
OUT = 'standalone__batchnorm__prompt.s'
KN = 'standalone__batchnorm__prompt_kernel'

PITCH = 1152
XBATCH = 2048 * PITCH
WTAP = 576 * PITCH
NSTAGE = 9
H_STD, H_LAST = 147, 137
NSTRIP = 14
NWG = 2 * NSTRIP * 9
XK = 19
XBUF = 162 * 128
WBUF = 192 * 128
WB0 = 3 * XBUF
LDS_TOTAL = 3 * XBUF + 3 * WBUF


def gen(out=OUT, NL=2, stamps=False, nomfma=False, nodma=False, pd=None, endwait=False, dbg=False, xpol='', wpol='', nostore=False, ldsst=False):
    L = []
    A = L.append
    for line in open(REF).read().split('\n'):
        if line.startswith('; @launch'):
            A(f'; @launch grid=({NWG},1,1) block=({64 * (4 + NL)},1,1) lds={LDS_TOTAL}')
        elif line.startswith(';'):
            A(line)
        else:
            break
    A('.amdgcn_target "amdgcn-amd-amdhsa--gfx950"')
    A('.text')
    A(f'.globl {KN}')
    A('.p2align 8')
    A(f'.type {KN},@function')
    A(f'{KN}:')
    A('  s_load_dwordx16 s[4:19], s[0:1], 0')
    A(f'  s_cmp_ge_u32 s2, {NWG}')
    A('  s_cbranch_scc1 L_end')
    if stamps or dbg:
        A('  s_load_dwordx2 s[72:73], s[0:1], 64')
        A('  s_memrealtime s[60:61]')
        A('  s_memtime s[62:63]')
    A('  s_and_b32 s20, s2, 7')
    A('  s_lshr_b32 s21, s2, 3')
    A('  s_mul_i32 s22, s20, 31')
    A('  s_min_u32 s23, s20, 4')
    A('  s_add_u32 s22, s22, s23')
    A('  s_add_u32 s22, s22, s21')
    A('  s_mul_i32 s23, s22, 57')
    A('  s_lshr_b32 s23, s23, 9')
    A('  s_mul_i32 s24, s23, 9')
    A('  s_sub_u32 s24, s22, s24')
    A(f'  s_cmp_ge_u32 s23, {NSTRIP}')
    A('  s_cselect_b32 s25, 1, 0')
    A(f'  s_mul_i32 s26, s25, {NSTRIP}')
    A('  s_sub_u32 s26, s23, s26')
    A(f'  s_mul_i32 s27, s26, {H_STD}')
    A(f'  s_mov_b32 s28, {H_STD}')
    A(f'  s_cmp_eq_u32 s26, {NSTRIP - 1}')
    A(f'  s_cselect_b32 s28, {H_LAST}, s28')
    A('  v_lshrrev_b32 v1, 6, v0')
    A('  v_and_b32 v0, 63, v0')
    A('  s_nop 1')
    A('  v_readfirstlane_b32 s29, v1')
    A('  s_waitcnt lgkmcnt(0)')
    A('  s_cmp_ge_u32 s29, 4')
    A('  s_cbranch_scc1 L_loader')

    ACC = 8
    XF = [48, 116]
    WF = [104, 172]
    XA = [184, 191]
    WA = [198, 199]
    SC = 200
    SH = 204
    T0 = 208
    VO = 228
    VW = 232
    VR = 237
    VS = 238
    NVG = 240 if ldsst else 232

    A('  s_lshl_b32 s30, s24, 7')
    A('  s_lshl_b32 s31, s29, 5')
    A('  s_add_u32 s30, s30, s31')
    A('  v_lshrrev_b32 v2, 4, v0')
    A('  v_lshlrev_b32 v4, 3, v2')
    A('  v_add_u32 v4, s30, v4')
    for i, base in enumerate((8, 10, 12, 14)):
        sr = 36 + 4 * i
        A(f'  s_mov_b32 s{sr}, s{base}')
        A(f'  s_mov_b32 s{sr + 1}, s{base + 1}')
        A(f'  s_mov_b32 s{sr + 2}, {576 * 2}')
        A(f'  s_mov_b32 s{sr + 3}, 0x00020000')
    for i in range(4):
        sr = 36 + 4 * i
        A(f'  buffer_load_dwordx2 v[{T0 + 2 * i}:{T0 + 2 * i + 1}], v4, s[{sr}:{sr + 3}], 0 offen')
    A('  v_and_b32 v1, 15, v0')
    A('  v_lshlrev_b32 v3, 2, v1')
    A('  v_add_u32 v3, v3, v1')
    for q in range(-1, 6):
        A(f'  v_add_u32 v4, {q + 1}, v3')
        A('  v_and_b32 v5, 7, v4')
        A('  v_xor_b32 v5, v5, v2')
        A('  v_lshlrev_b32 v5, 4, v5')
        A('  v_lshlrev_b32 v4, 7, v4')
        A(f'  v_add_u32 v{XA[0] + q + 1}, v4, v5')
        A(f'  v_xor_b32 v{XA[1] + q + 1}, 64, v{XA[0] + q + 1}')
    A('  v_lshrrev_b32 v4, 2, v1')
    A('  v_and_b32 v5, 3, v0')
    A('  v_lshrrev_b32 v6, 1, v4')
    A('  v_and_b32 v6, 1, v6')
    A('  v_and_b32 v7, 1, v2')
    A('  v_lshlrev_b32 v7, 1, v7')
    A('  v_or_b32 v6, v6, v7')
    A('  v_xor_b32 v6, s29, v6')
    A('  v_lshlrev_b32 v6, 5, v6')
    A('  v_lshlrev_b32 v7, 3, v2')
    A('  v_add_u32 v7, v7, v4')
    A('  v_lshlrev_b32 v7, 7, v7')
    A('  v_add_u32 v6, v6, v7')
    A('  v_lshlrev_b32 v5, 3, v5')
    A('  v_add_u32 v6, v6, v5')
    A(f'  v_add_u32 v{WA[0]}, {WB0}, v6')
    A(f'  v_add_u32 v{WA[1]}, {WB0 + 4096}, v6')
    A(f'  v_mul_u32_u24 v4, {PITCH}, v3')
    A('  v_lshlrev_b32 v5, 3, v2')
    A('  v_add_u32 v4, v4, v5')
    A('  s_lshl_b32 s30, s29, 5')
    A(f'  v_add_u32 v{VO}, s30, v4')
    A('  s_lshl_b32 s30, s25, 11')
    A('  s_add_u32 s30, s30, s27')
    A(f'  s_mul_i32 s30, s30, {PITCH}')
    A('  s_lshl_b32 s31, s24, 7')
    A('  s_add_u32 s30, s30, s31')
    A('  s_add_u32 s32, s16, s30')
    A('  s_addc_u32 s33, s17, 0')
    A(f'  s_mul_i32 s34, s28, {PITCH}')
    A(f'  s_sub_u32 s34, s34, {PITCH - 128}')
    A('  s_mov_b32 s35, 0x00020000')
    if ldsst:
        A('  s_lshl_b32 s30, s29, 1')
        A('  v_lshrrev_b32 v4, 1, v2')
        A('  v_add_u32 v4, s30, v4')
        A('  v_and_b32 v5, 1, v2')
        A('  v_lshlrev_b32 v5, 3, v5')
        for i in range(5):
            A(f'  v_add_u32 v6, {i}, v3')
            A('  v_and_b32 v7, 7, v6')
            A('  v_xor_b32 v7, v7, v4')
            A('  v_lshlrev_b32 v7, 4, v7')
            A('  v_lshlrev_b32 v6, 7, v6')
            A('  v_add_u32 v6, v6, v7')
            A(f'  v_add_u32 v{VW + i}, v6, v5')
        A('  s_lshl_b32 s30, s29, 10')
        A('  v_lshlrev_b32 v4, 4, v0')
        A(f'  v_add_u32 v{VR}, s30, v4')
        A('  v_lshrrev_b32 v4, 3, v0')
        A('  v_and_b32 v5, 7, v0')
        A('  v_xor_b32 v5, v5, v4')
        A('  v_lshlrev_b32 v5, 4, v5')
        A('  s_lshl_b32 s30, s29, 3')
        A('  v_add_u32 v4, s30, v4')
        A(f'  v_mul_u32_u24 v4, {PITCH}, v4')
        A(f'  v_add_u32 v{VS}, v4, v5')
    for i in range(40):
        A(f'  v_mov_b32 v{ACC + i}, 0')
    A('  s_waitcnt vmcnt(0)')

    def unpack(src, dst):
        A(f'  v_lshlrev_b32 v{dst}, 16, v{src}')
        A(f'  v_and_b32 v{dst + 1}, 0xffff0000, v{src}')
        A(f'  v_lshlrev_b32 v{dst + 2}, 16, v{src + 1}')
        A(f'  v_and_b32 v{dst + 3}, 0xffff0000, v{src + 1}')
    unpack(T0 + 0, T0 + 8)
    unpack(T0 + 2, T0 + 12)
    unpack(T0 + 4, T0 + 16)
    unpack(T0 + 6, SH)
    A('  v_mov_b32 v1, 0x3727c5ac')

    def rbf16(reg):
        A(f'  v_cvt_pk_bf16_f32 v{reg}, v{reg}, v{reg}')
        A(f'  v_lshlrev_b32 v{reg}, 16, v{reg}')
    for j in range(4):
        v = T0 + 12 + j
        A(f'  v_add_f32 v{v}, v{v}, v1')
        rbf16(v)
        A(f'  v_sqrt_f32 v{v}, v{v}')
        A('  s_nop 0')
        rbf16(v)
        A(f'  v_rcp_f32 v{v}, v{v}')
        A('  s_nop 0')
        rbf16(v)
        A(f'  v_mul_f32 v{v}, v{T0 + 16 + j}, v{v}')
        rbf16(v)
        A(f'  v_mov_b32 v{SC + j}, v{v}')
        A(f'  v_mul_f32 v{T0 + 8 + j}, v{T0 + 8 + j}, v{v}')
        A(f'  v_sub_f32 v{SH + j}, v{SH + j}, v{T0 + 8 + j}')

    def reads(p, kk):
        R = []
        for t in range(3):
            for j in range(2):
                R.append(f'  ds_read_b64_tr_b16 v[{WF[p] + 4 * t + 2 * j}:{WF[p] + 4 * t + 2 * j + 1}], v{WA[kk]} offset:{t * 8192 + j * 512}')
        for ga in range(2):
            for q in range(-1, 6):
                d = XF[p] + (ga * 7 + q + 1) * 4
                R.append(f'  ds_read_b128 v[{d}:{d + 3}], v{XA[kk] + q + 1} offset:{ga * 10240}')
        return R

    def mfmas(p):
        M = []
        for t in range(3):
            for ga in range(2):
                for i in range(5):
                    q = i + t - 1
                    a = ACC + (ga * 5 + i) * 4
                    xb = XF[p] + (ga * 7 + q + 1) * 4
                    wb = WF[p] + 4 * t
                    M.append(f'  v_mfma_f32_16x16x32_bf16 v[{a}:{a + 3}], v[{wb}:{wb + 3}], v[{xb}:{xb + 3}], v[{a}:{a + 3}]')
        return M

    def adv(kk, sx, sw):
        return [f'  v_add_u32 v{XA[kk] + i}, {sx}, v{XA[kk] + i}' for i in range(7)] + [f'  v_add_u32 v{WA[kk]}, {sw}, v{WA[kk]}']

    def chunk(p, R, V):
        M = mfmas(p)
        extra = list(R) + list(V)
        for k, m in enumerate(M):
            if not nomfma:
                A(m)
                if k < len(extra):
                    A(extra[k])

    A('  s_mov_b32 s52, 0')
    A('  s_mov_b32 s53, 0')
    A('  s_barrier')
    if stamps or dbg:
        A('  s_memtime s[64:65]')
    for r in reads(0, 0):
        A(r)
    A('L_cloop:')
    A(f'  s_mov_b32 s54, {XBUF}')
    A(f'  s_mov_b32 s56, {WBUF}')
    A('  s_cmp_eq_u32 s53, 2')
    A(f'  s_cselect_b32 s54, {-2 * XBUF}, s54')
    A(f'  s_cselect_b32 s56, {-2 * WBUF}, s56')
    A('  s_waitcnt lgkmcnt(0)')
    chunk(0, reads(1, 1), adv(0, 's54', 's56'))
    A('  s_waitcnt lgkmcnt(0)')
    A('  s_barrier')
    chunk(1, reads(0, 0), adv(1, 's54', 's56') + ['  s_add_u32 s53, s53, 1', '  s_cmp_eq_u32 s53, 3', '  s_cselect_b32 s53, 0, s53'][:2])
    A('  s_cselect_b32 s53, 0, s53')
    A('  s_add_u32 s52, s52, 1')
    A(f'  s_cmp_lt_u32 s52, {NSTAGE - 1}')
    A('  s_cbranch_scc1 L_cloop')
    A('  s_waitcnt lgkmcnt(0)')
    chunk(0, reads(1, 1), [])
    A('  s_waitcnt lgkmcnt(0)')
    if stamps or dbg:
        A('  s_memtime s[66:67]')
    A('  v_mov_b32 v1, 0xbfb8aa3b')

    def epi(T):
        ga, i = divmod(T, 5)
        a = ACC + T * 4
        tt = T0 + (T % 2) * 10
        E = []
        for j in range(4):
            E.append(f'  v_fma_f32 v{a + j}, v{a + j}, v{SC + j}, v{SH + j}')
        for j in range(4):
            E.append(f'  v_mul_f32 v{tt + j}, v{a + j}, v1')
        for j in range(4):
            E.append(f'  v_exp_f32 v{tt + j}, v{tt + j}')
        for j in range(4):
            E.append(f'  v_add_f32 v{tt + j}, 1.0, v{tt + j}')
        for j in range(4):
            E.append(f'  v_rcp_f32 v{tt + j}, v{tt + j}')
        for j in range(4):
            E.append(f'  v_mul_f32 v{tt + j}, v{a + j}, v{tt + j}')
        E.append(f'  v_cvt_pk_bf16_f32 v{tt + 4}, v{tt}, v{tt + 1}')
        E.append(f'  v_cvt_pk_bf16_f32 v{tt + 5}, v{tt + 2}, v{tt + 3}')
        E.append(f'  ds_write_b64 v{VW + i}, v[{tt + 4}:{tt + 5}] offset:{XBUF + 80 * ga * 128}')
        return E

    def tile_mfmas(T):
        ga, i = divmod(T, 5)
        a = ACC + T * 4
        M = []
        for t in range(3):
            q = i + t - 1
            xb = XF[1] + (ga * 7 + q + 1) * 4
            wb = WF[1] + 4 * t
            M.append(f'  v_mfma_f32_16x16x32_bf16 v[{a}:{a + 3}], v[{wb}:{wb + 3}], v[{xb}:{xb + 3}], v[{a}:{a + 3}]')
        return M
    for T in range(0, 10, 2):
        m0, m1 = tile_mfmas(T), tile_mfmas(T + 1)
        for k in range(3):
            A(m0[k]); A(m1[k])
        if T >= 2:
            for e in epi(T - 2) + epi(T - 1):
                A(e)
    A('  s_nop 7')
    for e in epi(8) + epi(9):
        A(e)
    A('  s_waitcnt lgkmcnt(0)')
    A('  s_barrier')
    for k in range(5):
        A(f'  ds_read_b128 v[{XF[0] + 4 * k}:{XF[0] + 4 * k + 3}], v{VR} offset:{XBUF + k * 4096}')
    for k in range(5):
        A(f'  s_waitcnt lgkmcnt({4 - k})')
        A(f'  s_mov_b32 s30, {k * 32 * PITCH}')
        A(f'  buffer_store_dwordx4 v[{XF[0] + 4 * k}:{XF[0] + 4 * k + 3}], v{VS}, s[32:35], s30 offen')
    if endwait or stamps or dbg:
        A('  s_waitcnt vmcnt(0)')
    A('  s_branch L_fin' if (stamps or dbg) else '  s_branch L_end')

    A('L_loader:')
    A(f'  s_mul_i32 s30, s25, {XBATCH}')
    A('  s_add_u32 s32, s4, s30')
    A('  s_addc_u32 s33, s5, 0')
    A(f'  s_mov_b32 s34, {XBATCH}')
    A('  s_mov_b32 s35, 0x00020000')
    A('  s_lshl_b32 s30, s24, 7')
    A('  s_add_u32 s36, s6, s30')
    A('  s_addc_u32 s37, s7, 0')
    A(f'  s_sub_u32 s38, {3 * WTAP}, s30')
    A('  s_mov_b32 s39, 0x00020000')
    A(f'  s_mul_i32 s40, s27, {PITCH}')
    A(f'  s_sub_u32 s40, s40, {PITCH}')
    A('  s_cmp_eq_u32 s26, 0')
    A('  s_cselect_b32 s41, 0, s40')
    A('  s_cselect_b32 s42, -1, 0')
    A('  v_lshrrev_b32 v1, 3, v0')
    A('  v_and_b32 v2, 7, v0')
    A(f'  v_mul_u32_u24 v3, {PITCH}, v1')
    A('  v_xor_b32 v4, v2, v1')
    A('  v_lshlrev_b32 v4, 4, v4')
    A('  v_add_u32 v4, v3, v4')
    A(f'  v_subrev_u32 v5, {PITCH}, v4')
    A('  v_mov_b32 v6, 0x40000000')
    A('  v_cmp_gt_u32 vcc, 8, v0')
    A('  v_cndmask_b32 v5, v5, v6, vcc')
    A('  v_mov_b32 v6, s42')
    A('  v_cmp_ne_u32 vcc, 0, v6')
    A('  v_cndmask_b32 v5, v4, v5, vcc')
    A('  v_lshrrev_b32 v6, 1, v1')
    A('  v_and_b32 v6, 1, v6')
    A('  v_lshrrev_b32 v7, 1, v2')
    A('  v_xor_b32 v8, v7, v6')
    A('  v_xor_b32 v9, 2, v8')
    A('  v_and_b32 v10, 1, v2')
    A('  v_lshlrev_b32 v8, 5, v8')
    A('  v_lshlrev_b32 v9, 5, v9')
    A('  v_lshlrev_b32 v10, 4, v10')
    A('  v_add_u32 v8, v8, v10')
    A('  v_add_u32 v9, v9, v10')
    A('  v_add_u32 v6, v3, v8')
    A('  v_add_u32 v7, v3, v9')
    if pd is not None:
        A('  s_mul_i32 s30, s21, 54')
        A('  v_add_u32 v11, s30, v0')
        A('  v_mul_u32_u24 v12, 57, v11')
        A('  v_lshrrev_b32 v12, 9, v12')
        A('  v_mul_u32_u24 v13, 9, v12')
        A('  v_sub_u32 v13, v11, v13')
        A('  v_lshrrev_b32 v14, 6, v12')
        A('  v_and_b32 v15, 63, v12')
        A(f'  v_mul_u32_u24 v14, {WTAP // 16}, v14')
        A('  v_lshlrev_b32 v14, 4, v14')
        A(f'  v_mul_u32_u24 v15, {PITCH}, v15')
        A('  v_lshlrev_b32 v13, 7, v13')
        A('  v_add_u32 v14, v14, v15')
        A('  v_add_u32 v14, v14, v13')
        A('  v_cmp_gt_u32 vcc, 54, v0')
        A('  v_mov_b32 v15, 0x40000000')
        A('  v_cndmask_b32 v11, v15, v14, vcc')
        A('  s_mul_i32 s30, s24, 17')
        A('  v_add_u32 v12, s30, v0')
        A(f'  v_mul_u32_u24 v12, {PITCH}, v12')
        A('  v_cmp_gt_u32 vcc, 17, v0')
        A('  v_cndmask_b32 v12, v15, v12, vcc')
        A('  s_mov_b32 s80, s6')
        A('  s_mov_b32 s81, s7')
        A(f'  s_mov_b32 s82, {3 * WTAP}')
        A('  s_mov_b32 s83, 0x00020000')

    ops = [('x', k) for k in range(XK)] + [('w', (t, h)) for t in range(3) for h in range(8)]

    def emit_dma(op):
        kind, idx = op
        if nodma:
            return
        if kind == 'x':
            k = idx
            A(f'  s_add_u32 m0, s48, {k * 1024}')
            if k == 0:
                A('  s_add_u32 s44, s41, s46')
                A(f'  buffer_load_dwordx4 v5, s[32:35], s44 offen {xpol} lds')
            else:
                A(f'  s_add_u32 s44, s51, {k * 8 * PITCH}')
                A(f'  buffer_load_dwordx4 v4, s[32:35], s44 offen {xpol} lds')
        else:
            t, h = idx
            A(f'  s_add_u32 m0, s49, {(t * 8 + h) * 1024}')
            A(f'  s_add_u32 s44, s47, {t * WTAP + 8 * h * PITCH}')
            A(f'  buffer_load_dwordx4 v{6 + (h & 1)}, s[36:39], s44 offen {wpol} lds')

    for lw in range(NL):
        if lw + 1 < NL:
            A(f'  s_cmp_lg_u32 s29, {4 + lw}')
            A(f'  s_cbranch_scc1 L_loader{lw + 1}')
        my = ops[lw::NL]
        n = len(my)
        npf = 1 if (pd is not None and lw < 2) else 0
        A('  s_mov_b32 s45, 0')
        A('  s_mov_b32 s46, 0')
        A('  s_mov_b32 s47, 0')
        A('  s_mov_b32 s50, 0')
        A(f'L_lloop{lw}:')
        A(f'  s_mul_i32 s48, s50, {XBUF}')
        A(f'  s_mul_i32 s49, s50, {WBUF}')
        A(f'  s_add_u32 s49, s49, {WB0}')
        A('  s_add_u32 s51, s40, s46')
        for op in my:
            emit_dma(op)
        if npf:
            A(f'  s_cmp_gt_u32 s45, {NSTAGE - 1 - pd}')
            if lw == 0:
                A(f'  s_add_u32 s44, s47, {pd * 64 * PITCH}')
                A('  s_cselect_b32 s44, 0x40000000, s44')
                A('  buffer_load_dword v20, v11, s[80:83], s44 offen')
            else:
                A(f'  s_add_u32 s44, s51, {PITCH + pd * 128}')
                A('  s_cselect_b32 s44, 0x40000000, s44')
                A('  buffer_load_dword v20, v12, s[32:35], s44 offen')
        if stamps:
            A('  s_cmp_lg_u32 s45, 2')
            A(f'  s_cbranch_scc1 L_ns{lw}')
            A('  s_memtime s[64:65]')
            A(f'L_ns{lw}:')
        A('  s_cmp_lt_u32 s45, 2')
        A(f'  s_cbranch_scc1 L_lnext{lw}')
        A(f'  s_cbranch_scc0 L_lw{lw}')
        A(f'L_lw{lw}:')
        A('  s_cmp_lg_u32 s45, 2')
        A(f'  s_cbranch_scc1 L_lskip{lw}')
        A(f'  s_waitcnt vmcnt({2 * n + 3 * npf})')
        A('  s_barrier')
        A(f'L_lskip{lw}:')
        A(f'  s_waitcnt vmcnt({n + 2 * npf})')
        if stamps:
            A('  s_memtime s[90:91]')
            A('  s_waitcnt lgkmcnt(0)')
            A('  s_mov_b32 m0, s45')
            A('  s_nop 0')
            A('  v_writelane_b32 v30, s90, m0')
        A('  s_barrier')
        A(f'L_lnext{lw}:')
        A('  s_add_u32 s45, s45, 1')
        A('  s_add_u32 s46, s46, 128')
        A(f'  s_add_u32 s47, s47, {64 * PITCH}')
        A('  s_add_u32 s50, s50, 1')
        A('  s_cmp_eq_u32 s50, 3')
        A('  s_cselect_b32 s50, 0, s50')
        A(f'  s_cmp_lt_u32 s45, {NSTAGE}')
        A(f'  s_cbranch_scc1 L_lloop{lw}')
        A('  s_waitcnt vmcnt(0)')
        A('  s_barrier')
        A('  s_barrier')
        if stamps:
            A('  s_memtime s[66:67]')
        A('  s_branch L_fin' if stamps else '  s_branch L_end')
        if lw + 1 < NL:
            A(f'L_loader{lw + 1}:')
    if dbg:
        A('L_fin:')
        A('  s_memtime s[68:69]')
        A('  s_memrealtime s[70:71]')
        A('  s_waitcnt lgkmcnt(0)')
        A('  s_mov_b32 s76, s18')
        A('  s_mov_b32 s77, s19')
        A('  s_mov_b32 s78, 256')
        A('  s_mov_b32 s79, 0x00020000')
        A('  s_cmp_lg_u32 s29, 0')
        A('  s_cbranch_scc1 L_end')
        A('  v_mov_b32 v1, 0')
        A('  v_mov_b32 v2, s70')
        A('  s_not_b32 s74, s60')
        A('  v_mov_b32 v3, s74')
        A('  buffer_atomic_umax v2, v1, s[76:79], 0 offen')
        A('  buffer_atomic_umax v3, v1, s[76:79], 0 offen offset:4')
        A('  s_sub_u32 s74, s64, s62')
        A('  s_sub_u32 s75, s66, s64')
        A('  s_sub_u32 s73, s68, s66')
        A('  v_mov_b32 v4, s74')
        A('  v_mov_b32 v5, s75')
        A('  v_mov_b32 v6, s73')
        A('  s_cmp_lg_u32 s2, 0')
        A('  s_cbranch_scc1 L_d1')
        A('  buffer_store_dwordx3 v[4:6], v1, s[76:79], 0 offen offset:16')
        A('L_d1:')
        A('  s_cmp_lg_u32 s2, 131')
        A('  s_cbranch_scc1 L_d2')
        A('  buffer_store_dwordx3 v[4:6], v1, s[76:79], 0 offen offset:32')
        A('L_d2:')
        A('  s_waitcnt vmcnt(0)')
    elif stamps:
        A('L_fin:')
        A('  s_memtime s[68:69]')
        A('  s_memrealtime s[70:71]')
        A('  s_waitcnt lgkmcnt(0)')
        A('  s_mov_b32 s76, s72')
        A('  s_mov_b32 s77, s73')
        A('  s_mov_b32 s78, 0x100000')
        A('  s_mov_b32 s79, 0x00020000')
        A(f'  s_mul_i32 s74, s2, {4 + NL}')
        A('  s_add_u32 s74, s74, s29')
        A('  s_lshl_b32 s74, s74, 6')
        A('  v_mov_b32 v1, s74')
        for i, sr in enumerate((60, 62, 64, 66, 68, 70)):
            A(f'  v_mov_b32 v{4 + i}, s{sr}')
        A('  v_mov_b32 v10, s29')
        A('  v_mov_b32 v11, s2')
        A('  buffer_store_dwordx4 v[4:7], v1, s[76:79], 0 offen')
        A('  buffer_store_dwordx4 v[8:11], v1, s[76:79], 0 offen offset:16')
        A('  s_cmp_lg_u32 s29, 4')
        A('  s_cbranch_scc1 L_fin2')
        A(f'  s_mul_i32 s74, s2, 64')
        A('  s_add_u32 s74, s74, 0x80000')
        A('  v_lshlrev_b32 v1, 2, v0')
        A('  v_add_u32 v1, s74, v1')
        A('  v_cmp_gt_u32 vcc, 16, v0')
        A('  s_and_saveexec_b64 s[92:93], vcc')
        A('  buffer_store_dword v30, v1, s[76:79], 0 offen')
        A('  s_mov_b64 exec, s[92:93]')
        A('L_fin2:')
        A('  s_waitcnt vmcnt(0)')
    A('L_end:')
    A('s_endpgm')
    A('.section .rodata,"a"')
    A('.p2align 6')
    A(f'.amdhsa_kernel {KN}')
    A(f'  .amdhsa_next_free_vgpr {NVG}')
    A('  .amdhsa_next_free_sgpr 102')
    A(f'  .amdhsa_accum_offset {NVG}')
    A('  .amdhsa_group_segment_fixed_size 0')
    A('  .amdhsa_kernarg_size 72')
    A('  .amdhsa_user_sgpr_count 2')
    A('  .amdhsa_user_sgpr_kernarg_segment_ptr 1')
    A('  .amdhsa_system_sgpr_workgroup_id_x 1')
    A('.end_amdhsa_kernel')
    open(out, 'w').write('\n'.join(L) + '\n')


if __name__ == '__main__':
    if len(sys.argv) > 1 and sys.argv[1] == 'bench':
        gen(out='c_base.s', stamps=True)
        gen(out='c_xnt.s', stamps=True, xpol='nt')
        gen(out='c_ldsst.s', stamps=True, xpol='nt', ldsst=True)
        gen(out='c_xnt_pd3.s', stamps=True, xpol='nt', pd=3)
        gen(out='c_xnt_pd5.s', stamps=True, xpol='nt', pd=5)
        gen(out='c_xnt_nl3.s', stamps=True, xpol='nt', NL=3)
        gen(out='c_xnt_nl4.s', stamps=True, xpol='nt', NL=4)
    elif len(sys.argv) > 1 and sys.argv[1] == 'dbg':
        gen(dbg=True)
    else:
        gen(xpol='nt', ldsst=True)
```

```python
import sys, os

REF = 'standalone__batchnorm__prompt.s.ref'
OUT = 'standalone__batchnorm__prompt.s'
KN = 'standalone__batchnorm__prompt_kernel'

PITCH = 1152
XBATCH = 2048 * PITCH
WTAP = 576 * PITCH
NSTAGE = 9
H_STD, H_LAST = 147, 137
NSTRIP = 14
NWG = 2 * NSTRIP * 9
XK = 19
XBUF = 162 * 128
WBUF = 192 * 128
WB0 = 3 * XBUF
LDS_TOTAL = 3 * XBUF + 3 * WBUF


def gen(out=OUT, NL=2, stamps=False, nomfma=False, nodma=False, pd=None, endwait=False, dbg=False, xpol='', wpol='', nostore=False, ldsst=False, stpol=''):
    L = []
    A = L.append
    for line in open(REF).read().split('\n'):
        if line.startswith('; @launch'):
            A(f'; @launch grid=({NWG},1,1) block=({64 * (4 + NL)},1,1) lds={LDS_TOTAL}')
        elif line.startswith(';'):
            A(line)
        else:
            break
    A('.amdgcn_target "amdgcn-amd-amdhsa--gfx950"')
    A('.text')
    A(f'.globl {KN}')
    A('.p2align 8')
    A(f'.type {KN},@function')
    A(f'{KN}:')
    A('  s_load_dwordx16 s[4:19], s[0:1], 0')
    A(f'  s_cmp_ge_u32 s2, {NWG}')
    A('  s_cbranch_scc1 L_end')
    if stamps or dbg:
        A('  s_load_dwordx2 s[72:73], s[0:1], 64')
        A('  s_memrealtime s[60:61]')
        A('  s_memtime s[62:63]')
    A('  s_and_b32 s20, s2, 7')
    A('  s_lshr_b32 s21, s2, 3')
    A('  s_mul_i32 s22, s20, 31')
    A('  s_min_u32 s23, s20, 4')
    A('  s_add_u32 s22, s22, s23')
    A('  s_add_u32 s22, s22, s21')
    A('  s_mul_i32 s23, s22, 57')
    A('  s_lshr_b32 s23, s23, 9')
    A('  s_mul_i32 s24, s23, 9')
    A('  s_sub_u32 s24, s22, s24')
    A(f'  s_cmp_ge_u32 s23, {NSTRIP}')
    A('  s_cselect_b32 s25, 1, 0')
    A(f'  s_mul_i32 s26, s25, {NSTRIP}')
    A('  s_sub_u32 s26, s23, s26')
    A(f'  s_mul_i32 s27, s26, {H_STD}')
    A(f'  s_mov_b32 s28, {H_STD}')
    A(f'  s_cmp_eq_u32 s26, {NSTRIP - 1}')
    A(f'  s_cselect_b32 s28, {H_LAST}, s28')
    A('  v_lshrrev_b32 v1, 6, v0')
    A('  v_and_b32 v0, 63, v0')
    A('  s_nop 1')
    A('  v_readfirstlane_b32 s29, v1')
    A('  s_waitcnt lgkmcnt(0)')
    A('  s_cmp_ge_u32 s29, 4')
    A('  s_cbranch_scc1 L_loader')

    ACC = 8
    XF = [48, 116]
    WF = [104, 172]
    XA = [184, 191]
    WA = [198, 199]
    SC = 200
    SH = 204
    T0 = 208
    VO = 228
    VW = 232
    VR = 237
    VS = 238
    NVG = 240 if ldsst else 232

    A('  s_lshl_b32 s30, s24, 7')
    A('  s_lshl_b32 s31, s29, 5')
    A('  s_add_u32 s30, s30, s31')
    A('  v_lshrrev_b32 v2, 4, v0')
    A('  v_lshlrev_b32 v4, 3, v2')
    A('  v_add_u32 v4, s30, v4')
    for i, base in enumerate((8, 10, 12, 14)):
        sr = 36 + 4 * i
        A(f'  s_mov_b32 s{sr}, s{base}')
        A(f'  s_mov_b32 s{sr + 1}, s{base + 1}')
        A(f'  s_mov_b32 s{sr + 2}, {576 * 2}')
        A(f'  s_mov_b32 s{sr + 3}, 0x00020000')
    for i in range(4):
        sr = 36 + 4 * i
        A(f'  buffer_load_dwordx2 v[{T0 + 2 * i}:{T0 + 2 * i + 1}], v4, s[{sr}:{sr + 3}], 0 offen')
    A('  v_and_b32 v1, 15, v0')
    A('  v_lshlrev_b32 v3, 2, v1')
    A('  v_add_u32 v3, v3, v1')
    for q in range(-1, 6):
        A(f'  v_add_u32 v4, {q + 1}, v3')
        A('  v_and_b32 v5, 7, v4')
        A('  v_xor_b32 v5, v5, v2')
        A('  v_lshlrev_b32 v5, 4, v5')
        A('  v_lshlrev_b32 v4, 7, v4')
        A(f'  v_add_u32 v{XA[0] + q + 1}, v4, v5')
        A(f'  v_xor_b32 v{XA[1] + q + 1}, 64, v{XA[0] + q + 1}')
    A('  v_lshrrev_b32 v4, 2, v1')
    A('  v_and_b32 v5, 3, v0')
    A('  v_lshrrev_b32 v6, 1, v4')
    A('  v_and_b32 v6, 1, v6')
    A('  v_and_b32 v7, 1, v2')
    A('  v_lshlrev_b32 v7, 1, v7')
    A('  v_or_b32 v6, v6, v7')
    A('  v_xor_b32 v6, s29, v6')
    A('  v_lshlrev_b32 v6, 5, v6')
    A('  v_lshlrev_b32 v7, 3, v2')
    A('  v_add_u32 v7, v7, v4')
    A('  v_lshlrev_b32 v7, 7, v7')
    A('  v_add_u32 v6, v6, v7')
    A('  v_lshlrev_b32 v5, 3, v5')
    A('  v_add_u32 v6, v6, v5')
    A(f'  v_add_u32 v{WA[0]}, {WB0}, v6')
    A(f'  v_add_u32 v{WA[1]}, {WB0 + 4096}, v6')
    A(f'  v_mul_u32_u24 v4, {PITCH}, v3')
    A('  v_lshlrev_b32 v5, 3, v2')
    A('  v_add_u32 v4, v4, v5')
    A('  s_lshl_b32 s30, s29, 5')
    A(f'  v_add_u32 v{VO}, s30, v4')
    A('  s_lshl_b32 s30, s25, 11')
    A('  s_add_u32 s30, s30, s27')
    A(f'  s_mul_i32 s30, s30, {PITCH}')
    A('  s_lshl_b32 s31, s24, 7')
    A('  s_add_u32 s30, s30, s31')
    A('  s_add_u32 s32, s16, s30')
    A('  s_addc_u32 s33, s17, 0')
    A(f'  s_mul_i32 s34, s28, {PITCH}')
    A(f'  s_sub_u32 s34, s34, {PITCH - 128}')
    A('  s_mov_b32 s35, 0x00020000')
    if ldsst:
        A('  s_lshl_b32 s30, s29, 1')
        A('  v_lshrrev_b32 v4, 1, v2')
        A('  v_add_u32 v4, s30, v4')
        A('  v_and_b32 v5, 1, v2')
        A('  v_lshlrev_b32 v5, 3, v5')
        for i in range(5):
            A(f'  v_add_u32 v6, {i}, v3')
            A('  v_and_b32 v7, 7, v6')
            A('  v_xor_b32 v7, v7, v4')
            A('  v_lshlrev_b32 v7, 4, v7')
            A('  v_lshlrev_b32 v6, 7, v6')
            A('  v_add_u32 v6, v6, v7')
            A(f'  v_add_u32 v{VW + i}, v6, v5')
        A('  s_lshl_b32 s30, s29, 10')
        A('  v_lshlrev_b32 v4, 4, v0')
        A(f'  v_add_u32 v{VR}, s30, v4')
        A('  v_lshrrev_b32 v4, 3, v0')
        A('  v_and_b32 v5, 7, v0')
        A('  v_xor_b32 v5, v5, v4')
        A('  v_lshlrev_b32 v5, 4, v5')
        A('  s_lshl_b32 s30, s29, 3')
        A('  v_add_u32 v4, s30, v4')
        A(f'  v_mul_u32_u24 v4, {PITCH}, v4')
        A(f'  v_add_u32 v{VS}, v4, v5')
    for i in range(40):
        A(f'  v_mov_b32 v{ACC + i}, 0')
    A('  s_waitcnt vmcnt(0)')

    def unpack(src, dst):
        A(f'  v_lshlrev_b32 v{dst}, 16, v{src}')
        A(f'  v_and_b32 v{dst + 1}, 0xffff0000, v{src}')
        A(f'  v_lshlrev_b32 v{dst + 2}, 16, v{src + 1}')
        A(f'  v_and_b32 v{dst + 3}, 0xffff0000, v{src + 1}')
    unpack(T0 + 0, T0 + 8)
    unpack(T0 + 2, T0 + 12)
    unpack(T0 + 4, T0 + 16)
    unpack(T0 + 6, SH)
    A('  v_mov_b32 v1, 0x3727c5ac')

    def rbf16(reg):
        A(f'  v_cvt_pk_bf16_f32 v{reg}, v{reg}, v{reg}')
        A(f'  v_lshlrev_b32 v{reg}, 16, v{reg}')
    for j in range(4):
        v = T0 + 12 + j
        A(f'  v_add_f32 v{v}, v{v}, v1')
        rbf16(v)
        A(f'  v_sqrt_f32 v{v}, v{v}')
        A('  s_nop 0')
        rbf16(v)
        A(f'  v_rcp_f32 v{v}, v{v}')
        A('  s_nop 0')
        rbf16(v)
        A(f'  v_mul_f32 v{v}, v{T0 + 16 + j}, v{v}')
        rbf16(v)
        A(f'  v_mov_b32 v{SC + j}, v{v}')
        A(f'  v_mul_f32 v{T0 + 8 + j}, v{T0 + 8 + j}, v{v}')
        A(f'  v_sub_f32 v{SH + j}, v{SH + j}, v{T0 + 8 + j}')

    def reads(p, kk):
        R = []
        for t in range(3):
            for j in range(2):
                R.append(f'  ds_read_b64_tr_b16 v[{WF[p] + 4 * t + 2 * j}:{WF[p] + 4 * t + 2 * j + 1}], v{WA[kk]} offset:{t * 8192 + j * 512}')
        for ga in range(2):
            for q in range(-1, 6):
                d = XF[p] + (ga * 7 + q + 1) * 4
                R.append(f'  ds_read_b128 v[{d}:{d + 3}], v{XA[kk] + q + 1} offset:{ga * 10240}')
        return R

    def mfmas(p):
        M = []
        for t in range(3):
            for ga in range(2):
                for i in range(5):
                    q = i + t - 1
                    a = ACC + (ga * 5 + i) * 4
                    xb = XF[p] + (ga * 7 + q + 1) * 4
                    wb = WF[p] + 4 * t
                    M.append(f'  v_mfma_f32_16x16x32_bf16 v[{a}:{a + 3}], v[{wb}:{wb + 3}], v[{xb}:{xb + 3}], v[{a}:{a + 3}]')
        return M

    def adv(kk, sx, sw):
        return [f'  v_add_u32 v{XA[kk] + i}, {sx}, v{XA[kk] + i}' for i in range(7)] + [f'  v_add_u32 v{WA[kk]}, {sw}, v{WA[kk]}']

    def chunk(p, R, V):
        M = mfmas(p)
        extra = list(R) + list(V)
        for k, m in enumerate(M):
            if not nomfma:
                A(m)
                if k < len(extra):
                    A(extra[k])

    A('  s_mov_b32 s52, 0')
    A('  s_mov_b32 s53, 0')
    A('  s_barrier')
    if stamps or dbg:
        A('  s_memtime s[64:65]')
    for r in reads(0, 0):
        A(r)
    A('L_cloop:')
    A(f'  s_mov_b32 s54, {XBUF}')
    A(f'  s_mov_b32 s56, {WBUF}')
    A('  s_cmp_eq_u32 s53, 2')
    A(f'  s_cselect_b32 s54, {-2 * XBUF}, s54')
    A(f'  s_cselect_b32 s56, {-2 * WBUF}, s56')
    A('  s_waitcnt lgkmcnt(0)')
    chunk(0, reads(1, 1), adv(0, 's54', 's56'))
    A('  s_waitcnt lgkmcnt(0)')
    A('  s_barrier')
    chunk(1, reads(0, 0), adv(1, 's54', 's56') + ['  s_add_u32 s53, s53, 1', '  s_cmp_eq_u32 s53, 3', '  s_cselect_b32 s53, 0, s53'][:2])
    A('  s_cselect_b32 s53, 0, s53')
    A('  s_add_u32 s52, s52, 1')
    A(f'  s_cmp_lt_u32 s52, {NSTAGE - 1}')
    A('  s_cbranch_scc1 L_cloop')
    A('  s_waitcnt lgkmcnt(0)')
    chunk(0, reads(1, 1), [])
    A('  s_waitcnt lgkmcnt(0)')
    if stamps or dbg:
        A('  s_memtime s[66:67]')
    A('  v_mov_b32 v1, 0xbfb8aa3b')

    def epi(T):
        ga, i = divmod(T, 5)
        a = ACC + T * 4
        tt = T0 + (T % 2) * 10
        E = []
        for j in range(4):
            E.append(f'  v_fma_f32 v{a + j}, v{a + j}, v{SC + j}, v{SH + j}')
        for j in range(4):
            E.append(f'  v_mul_f32 v{tt + j}, v{a + j}, v1')
        for j in range(4):
            E.append(f'  v_exp_f32 v{tt + j}, v{tt + j}')
        for j in range(4):
            E.append(f'  v_add_f32 v{tt + j}, 1.0, v{tt + j}')
        for j in range(4):
            E.append(f'  v_rcp_f32 v{tt + j}, v{tt + j}')
        for j in range(4):
            E.append(f'  v_mul_f32 v{tt + j}, v{a + j}, v{tt + j}')
        E.append(f'  v_cvt_pk_bf16_f32 v{tt + 4}, v{tt}, v{tt + 1}')
        E.append(f'  v_cvt_pk_bf16_f32 v{tt + 5}, v{tt + 2}, v{tt + 3}')
        E.append(f'  ds_write_b64 v{VW + i}, v[{tt + 4}:{tt + 5}] offset:{XBUF + 80 * ga * 128}')
        return E

    def tile_mfmas(T):
        ga, i = divmod(T, 5)
        a = ACC + T * 4
        M = []
        for t in range(3):
            q = i + t - 1
            xb = XF[1] + (ga * 7 + q + 1) * 4
            wb = WF[1] + 4 * t
            M.append(f'  v_mfma_f32_16x16x32_bf16 v[{a}:{a + 3}], v[{wb}:{wb + 3}], v[{xb}:{xb + 3}], v[{a}:{a + 3}]')
        return M
    for T in range(0, 10, 2):
        m0, m1 = tile_mfmas(T), tile_mfmas(T + 1)
        for k in range(3):
            A(m0[k]); A(m1[k])
        if T >= 2:
            for e in epi(T - 2) + epi(T - 1):
                A(e)
    A('  s_nop 7')
    for e in epi(8) + epi(9):
        A(e)
    A('  s_waitcnt lgkmcnt(0)')
    A('  s_barrier')
    for k in range(5):
        A(f'  ds_read_b128 v[{XF[0] + 4 * k}:{XF[0] + 4 * k + 3}], v{VR} offset:{XBUF + k * 4096}')
    for k in range(5):
        A(f'  s_waitcnt lgkmcnt({4 - k})')
        A(f'  s_mov_b32 s30, {k * 32 * PITCH}')
        A(f'  buffer_store_dwordx4 v[{XF[0] + 4 * k}:{XF[0] + 4 * k + 3}], v{VS}, s[32:35], s30 offen {stpol}')
    if endwait or stamps or dbg:
        A('  s_waitcnt vmcnt(0)')
    A('  s_branch L_fin' if (stamps or dbg) else '  s_branch L_end')

    A('L_loader:')
    A(f'  s_mul_i32 s30, s25, {XBATCH}')
    A('  s_add_u32 s32, s4, s30')
    A('  s_addc_u32 s33, s5, 0')
    A(f'  s_mov_b32 s34, {XBATCH}')
    A('  s_mov_b32 s35, 0x00020000')
    A('  s_lshl_b32 s30, s24, 7')
    A('  s_add_u32 s36, s6, s30')
    A('  s_addc_u32 s37, s7, 0')
    A(f'  s_sub_u32 s38, {3 * WTAP}, s30')
    A('  s_mov_b32 s39, 0x00020000')
    A(f'  s_mul_i32 s40, s27, {PITCH}')
    A(f'  s_sub_u32 s40, s40, {PITCH}')
    A('  s_cmp_eq_u32 s26, 0')
    A('  s_cselect_b32 s41, 0, s40')
    A('  s_cselect_b32 s42, -1, 0')
    A('  v_lshrrev_b32 v1, 3, v0')
    A('  v_and_b32 v2, 7, v0')
    A(f'  v_mul_u32_u24 v3, {PITCH}, v1')
    A('  v_xor_b32 v4, v2, v1')
    A('  v_lshlrev_b32 v4, 4, v4')
    A('  v_add_u32 v4, v3, v4')
    A(f'  v_subrev_u32 v5, {PITCH}, v4')
    A('  v_mov_b32 v6, 0x40000000')
    A('  v_cmp_gt_u32 vcc, 8, v0')
    A('  v_cndmask_b32 v5, v5, v6, vcc')
    A('  v_mov_b32 v6, s42')
    A('  v_cmp_ne_u32 vcc, 0, v6')
    A('  v_cndmask_b32 v5, v4, v5, vcc')
    A('  v_lshrrev_b32 v6, 1, v1')
    A('  v_and_b32 v6, 1, v6')
    A('  v_lshrrev_b32 v7, 1, v2')
    A('  v_xor_b32 v8, v7, v6')
    A('  v_xor_b32 v9, 2, v8')
    A('  v_and_b32 v10, 1, v2')
    A('  v_lshlrev_b32 v8, 5, v8')
    A('  v_lshlrev_b32 v9, 5, v9')
    A('  v_lshlrev_b32 v10, 4, v10')
    A('  v_add_u32 v8, v8, v10')
    A('  v_add_u32 v9, v9, v10')
    A('  v_add_u32 v6, v3, v8')
    A('  v_add_u32 v7, v3, v9')
    if pd is not None:
        A('  s_mul_i32 s30, s21, 54')
        A('  v_add_u32 v11, s30, v0')
        A('  v_mul_u32_u24 v12, 57, v11')
        A('  v_lshrrev_b32 v12, 9, v12')
        A('  v_mul_u32_u24 v13, 9, v12')
        A('  v_sub_u32 v13, v11, v13')
        A('  v_lshrrev_b32 v14, 6, v12')
        A('  v_and_b32 v15, 63, v12')
        A(f'  v_mul_u32_u24 v14, {WTAP // 16}, v14')
        A('  v_lshlrev_b32 v14, 4, v14')
        A(f'  v_mul_u32_u24 v15, {PITCH}, v15')
        A('  v_lshlrev_b32 v13, 7, v13')
        A('  v_add_u32 v14, v14, v15')
        A('  v_add_u32 v14, v14, v13')
        A('  v_cmp_gt_u32 vcc, 54, v0')
        A('  v_mov_b32 v15, 0x40000000')
        A('  v_cndmask_b32 v11, v15, v14, vcc')
        A('  s_mul_i32 s30, s24, 17')
        A('  v_add_u32 v12, s30, v0')
        A(f'  v_mul_u32_u24 v12, {PITCH}, v12')
        A('  v_cmp_gt_u32 vcc, 17, v0')
        A('  v_cndmask_b32 v12, v15, v12, vcc')
        A('  s_mov_b32 s80, s6')
        A('  s_mov_b32 s81, s7')
        A(f'  s_mov_b32 s82, {3 * WTAP}')
        A('  s_mov_b32 s83, 0x00020000')

    ops = [('x', k) for k in range(XK)] + [('w', (t, h)) for t in range(3) for h in range(8)]

    def emit_dma(op):
        kind, idx = op
        if nodma:
            return
        if kind == 'x':
            k = idx
            A(f'  s_add_u32 m0, s48, {k * 1024}')
            if k == 0:
                A('  s_add_u32 s44, s41, s46')
                A(f'  buffer_load_dwordx4 v5, s[32:35], s44 offen {xpol} lds')
            else:
                A(f'  s_add_u32 s44, s51, {k * 8 * PITCH}')
                A(f'  buffer_load_dwordx4 v4, s[32:35], s44 offen {xpol} lds')
        else:
            t, h = idx
            A(f'  s_add_u32 m0, s49, {(t * 8 + h) * 1024}')
            A(f'  s_add_u32 s44, s47, {t * WTAP + 8 * h * PITCH}')
            A(f'  buffer_load_dwordx4 v{6 + (h & 1)}, s[36:39], s44 offen {wpol} lds')

    for lw in range(NL):
        if lw + 1 < NL:
            A(f'  s_cmp_lg_u32 s29, {4 + lw}')
            A(f'  s_cbranch_scc1 L_loader{lw + 1}')
        my = ops[lw::NL]
        n = len(my)
        npf = 1 if (pd is not None and lw < 2) else 0
        A('  s_mov_b32 s45, 0')
        A('  s_mov_b32 s46, 0')
        A('  s_mov_b32 s47, 0')
        A('  s_mov_b32 s50, 0')
        A(f'L_lloop{lw}:')
        A(f'  s_mul_i32 s48, s50, {XBUF}')
        A(f'  s_mul_i32 s49, s50, {WBUF}')
        A(f'  s_add_u32 s49, s49, {WB0}')
        A('  s_add_u32 s51, s40, s46')
        for op in my:
            emit_dma(op)
        if npf:
            A(f'  s_cmp_gt_u32 s45, {NSTAGE - 1 - pd}')
            if lw == 0:
                A(f'  s_add_u32 s44, s47, {pd * 64 * PITCH}')
                A('  s_cselect_b32 s44, 0x40000000, s44')
                A('  buffer_load_dword v20, v11, s[80:83], s44 offen')
            else:
                A(f'  s_add_u32 s44, s51, {PITCH + pd * 128}')
                A('  s_cselect_b32 s44, 0x40000000, s44')
                A('  buffer_load_dword v20, v12, s[32:35], s44 offen')
        if stamps:
            A('  s_cmp_lg_u32 s45, 2')
            A(f'  s_cbranch_scc1 L_ns{lw}')
            A('  s_memtime s[64:65]')
            A(f'L_ns{lw}:')
        A('  s_cmp_eq_u32 s45, 0')
        A(f'  s_cbranch_scc1 L_lnext{lw}')
        A(f'  s_waitcnt vmcnt({n + 2 * npf})')
        if stamps:
            A('  s_memtime s[90:91]')
            A('  s_waitcnt lgkmcnt(0)')
            A('  s_mov_b32 m0, s45')
            A('  s_nop 0')
            A('  v_writelane_b32 v30, s90, m0')
        A('  s_barrier')
        A(f'L_lnext{lw}:')
        A('  s_add_u32 s45, s45, 1')
        A('  s_add_u32 s46, s46, 128')
        A(f'  s_add_u32 s47, s47, {64 * PITCH}')
        A('  s_add_u32 s50, s50, 1')
        A('  s_cmp_eq_u32 s50, 3')
        A('  s_cselect_b32 s50, 0, s50')
        A(f'  s_cmp_lt_u32 s45, {NSTAGE}')
        A(f'  s_cbranch_scc1 L_lloop{lw}')
        A('  s_waitcnt vmcnt(0)')
        A('  s_barrier')
        A('  s_barrier')
        if stamps:
            A('  s_memtime s[66:67]')
        A('  s_branch L_fin' if stamps else '  s_branch L_end')
        if lw + 1 < NL:
            A(f'L_loader{lw + 1}:')
    if dbg:
        A('L_fin:')
        A('  s_memtime s[68:69]')
        A('  s_memrealtime s[70:71]')
        A('  s_waitcnt lgkmcnt(0)')
        A('  s_mov_b32 s76, s18')
        A('  s_mov_b32 s77, s19')
        A('  s_mov_b32 s78, 256')
        A('  s_mov_b32 s79, 0x00020000')
        A('  s_cmp_lg_u32 s29, 0')
        A('  s_cbranch_scc1 L_end')
        A('  v_mov_b32 v1, 0')
        A('  v_mov_b32 v2, s70')
        A('  s_not_b32 s74, s60')
        A('  v_mov_b32 v3, s74')
        A('  buffer_atomic_umax v2, v1, s[76:79], 0 offen')
        A('  buffer_atomic_umax v3, v1, s[76:79], 0 offen offset:4')
        A('  s_sub_u32 s74, s64, s62')
        A('  s_sub_u32 s75, s66, s64')
        A('  s_sub_u32 s73, s68, s66')
        A('  v_mov_b32 v4, s74')
        A('  v_mov_b32 v5, s75')
        A('  v_mov_b32 v6, s73')
        A('  s_cmp_lg_u32 s2, 0')
        A('  s_cbranch_scc1 L_d1')
        A('  buffer_store_dwordx3 v[4:6], v1, s[76:79], 0 offen offset:16')
        A('L_d1:')
        A('  s_cmp_lg_u32 s2, 131')
        A('  s_cbranch_scc1 L_d2')
        A('  buffer_store_dwordx3 v[4:6], v1, s[76:79], 0 offen offset:32')
        A('L_d2:')
        A('  s_waitcnt vmcnt(0)')
    elif stamps:
        A('L_fin:')
        A('  s_memtime s[68:69]')
        A('  s_memrealtime s[70:71]')
        A('  s_waitcnt lgkmcnt(0)')
        A('  s_mov_b32 s76, s72')
        A('  s_mov_b32 s77, s73')
        A('  s_mov_b32 s78, 0x100000')
        A('  s_mov_b32 s79, 0x00020000')
        A(f'  s_mul_i32 s74, s2, {4 + NL}')
        A('  s_add_u32 s74, s74, s29')
        A('  s_lshl_b32 s74, s74, 6')
        A('  v_mov_b32 v1, s74')
        for i, sr in enumerate((60, 62, 64, 66, 68, 70)):
            A(f'  v_mov_b32 v{4 + i}, s{sr}')
        A('  v_mov_b32 v10, s29')
        A('  v_mov_b32 v11, s2')
        A('  buffer_store_dwordx4 v[4:7], v1, s[76:79], 0 offen')
        A('  buffer_store_dwordx4 v[8:11], v1, s[76:79], 0 offen offset:16')
        A('  s_cmp_lg_u32 s29, 4')
        A('  s_cbranch_scc1 L_fin2')
        A(f'  s_mul_i32 s74, s2, 64')
        A('  s_add_u32 s74, s74, 0x80000')
        A('  v_lshlrev_b32 v1, 2, v0')
        A('  v_add_u32 v1, s74, v1')
        A('  v_cmp_gt_u32 vcc, 16, v0')
        A('  s_and_saveexec_b64 s[92:93], vcc')
        A('  buffer_store_dword v30, v1, s[76:79], 0 offen')
        A('  s_mov_b64 exec, s[92:93]')
        A('L_fin2:')
        A('  s_waitcnt vmcnt(0)')
    A('L_end:')
    A('s_endpgm')
    A('.section .rodata,"a"')
    A('.p2align 6')
    A(f'.amdhsa_kernel {KN}')
    A(f'  .amdhsa_next_free_vgpr {NVG}')
    A('  .amdhsa_next_free_sgpr 102')
    A(f'  .amdhsa_accum_offset {NVG}')
    A('  .amdhsa_group_segment_fixed_size 0')
    A('  .amdhsa_kernarg_size 72')
    A('  .amdhsa_user_sgpr_count 2')
    A('  .amdhsa_user_sgpr_kernarg_segment_ptr 1')
    A('  .amdhsa_system_sgpr_workgroup_id_x 1')
    A('.end_amdhsa_kernel')
    open(out, 'w').write('\n'.join(L) + '\n')


if __name__ == '__main__':
    if len(sys.argv) > 1 and sys.argv[1] == 'bench':
        gen(out='c_base.s', stamps=True)
        gen(out='c_xnt.s', stamps=True, xpol='nt')
        gen(out='c_ldsst.s', stamps=True, xpol='nt', ldsst=True)
        gen(out='c_stnt.s', stamps=True, xpol='nt', ldsst=True, stpol='nt')
        gen(out='c_stsc.s', stamps=True, xpol='nt', ldsst=True, stpol='sc0 sc1')
        gen(out='c_xnt_pd3.s', stamps=True, xpol='nt', pd=3)
        gen(out='c_xnt_pd5.s', stamps=True, xpol='nt', pd=5)
        gen(out='c_xnt_nl3.s', stamps=True, xpol='nt', NL=3)
        gen(out='c_xnt_nl4.s', stamps=True, xpol='nt', NL=4)
    elif len(sys.argv) > 1 and sys.argv[1] == 'dbg':
        gen(dbg=True)
    else:
        gen(xpol='nt', ldsst=True)
```
